```python
import torch

def _softmax(x, axis=-1):
    return torch.softmax(x, dim=axis)

def _gelu(x):
    return torch.nn.functional.gelu(x, approximate='tanh')

def _silu(x):
    return torch.nn.functional.silu(x)

def _sigmoid(x):
    return torch.sigmoid(x)

def _layernorm(x, axis=-1, eps=1e-05):
    m = x.mean(dim=axis, keepdim=True)
    v = x.var(dim=axis, keepdim=True, unbiased=False)
    return (x - m) / torch.sqrt(v + eps)

def _scatter_add(tgt, idx, src, axis=0):
    return tgt.clone().index_add_(axis, idx, src)

def _segment_sum(src, seg, n):
    out = torch.zeros((n,) + src.shape[1:], dtype=src.dtype)
    return out.index_add_(0, seg, src)

def _pad(x, pw):
    flat = tuple((v for pair in reversed(pw) for v in pair))
    return torch.nn.functional.pad(x, flat)
kernel_name = 'adaLN_cond__ssm_conv_s4d__glu_gated_geglu__prompt'

def setup_inputs():

    _w = lambda a: (lambda t: t.to(torch.bfloat16) if t.is_floating_point() else t)(torch.as_tensor(a))

    def _A_setup():
        Bsz, L, D, N = (1, 2048, 512, 128)
        return {'u': _w((lambda *s: torch.randn(*s, dtype=torch.bfloat16) * 0.05)(Bsz, L, D)), 'log_A_real': _w((lambda *s: torch.randn(*s, dtype=torch.bfloat16) * 3.2)(D, N) * 0.5), 'A_imag': _w((lambda *s: torch.randn(*s, dtype=torch.bfloat16) * 0.05)(D, N) * 3.14), 'C_real': _w((lambda *s: torch.randn(*s, dtype=torch.bfloat16) * 0.4)(D, N) / N ** 0.5), 'C_imag': _w((lambda *s: torch.randn(*s, dtype=torch.bfloat16) * 0.4)(D, N) / N ** 0.5), 'log_dt': _w((lambda *s: torch.randn(*s, dtype=torch.bfloat16) * 0.05)(D) * 0.5 - 4.0), 'D_skip': _w((lambda *s: torch.randn(*s, dtype=torch.bfloat16) * 0.1)(D))}
    _A_in = _A_setup()

    def _B_setup():
        B, S, Dm, Df = (1, 2048, 512, 1376)
        return {'x': _w((lambda *s: torch.randn(*s, dtype=torch.bfloat16) * 0.05)(B, S, Dm)), 'w_gate': _w((lambda *s: torch.randn(*s, dtype=torch.bfloat16) * 0.8)(Dm, Df) * Dm ** (-0.5)), 'w_up': _w((lambda *s: torch.randn(*s, dtype=torch.bfloat16) * 0.8)(Dm, Df) * Dm ** (-0.5)), 'w_down': _w((lambda *s: torch.randn(*s, dtype=torch.bfloat16) * 0.8)(Df, Dm) * Df ** (-0.5))}
    _B_in = _B_setup()
    return {'A_u': _A_in['u'], 'A_log_A_real': _A_in['log_A_real'], 'A_A_imag': _A_in['A_imag'], 'A_C_real': _A_in['C_real'], 'A_C_imag': _A_in['C_imag'], 'A_log_dt': _A_in['log_dt'], 'A_D_skip': _A_in['D_skip'], 'B_x': _B_in['x'], 'B_w_gate': _B_in['w_gate'], 'B_w_up': _B_in['w_up'], 'B_w_down': _B_in['w_down'], 'c': _w((lambda *s: torch.randn(*s, dtype=torch.bfloat16) * 0.2)(1, 512) * 8.0), 'w_mod': _w((lambda *s: torch.randn(*s, dtype=torch.bfloat16) * 0.2)(512, 6 * 512) * 512 ** (-0.5) * 8.0)}

def reference(A_u, A_log_A_real, A_A_imag, A_C_real, A_C_imag, A_log_dt, A_D_skip, B_x, B_w_gate, B_w_up, B_w_down, c, w_mod):

    def _A_ref(u, log_A_real, A_imag, C_real, C_imag, log_dt, D_skip):
        L = u.shape[1]
        dt = torch.exp(log_dt)
        A = -torch.exp(log_A_real) + 1j * A_imag
        C = (C_real + 1j * C_imag) * dt[:, None]
        pos = (lambda x, dt: x.to(dt))(torch.arange(L), log_dt.dtype)
        P = torch.exp((A * dt[:, None])[:, :, None] * pos[None, None, :])
        K = 2.0 * torch.einsum('dn,dnl->dl', C, P).real
        L2 = 2 * L
        u_t = (lambda x, *d: x.permute(*d))(u, 0, 2, 1)
        Kf = (lambda x, *a, **k: torch.fft.rfft(x.float(), *a, **k))(K, L2)
        Uf = (lambda x, *a, **k: torch.fft.rfft(x.float(), *a, **k))(u_t, L2)
        y = (lambda x, *a, **k: torch.fft.irfft(x, *a, **k).to(torch.bfloat16))(Uf * Kf[None, :, :], L2)[:, :, :L]
        y = (lambda x, *d: x.permute(*d))(y, 0, 2, 1)
        return y + u * D_skip[None, None, :]

    def _B_ref(x, w_gate, w_up, w_down):
        g = torch.einsum('bsd,df->bsf', x, w_gate)
        u = torch.einsum('bsd,df->bsf', x, w_up)
        h = _gelu(g) * u
        return torch.einsum('bsf,fd->bsd', h, w_down)
    x = A_u
    mod = (_silu(c) @ w_mod).reshape(c.shape[0], 6, 1, -1)
    sa, ca, ga, sb, cb, gb = (mod[:, 0].clone(), mod[:, 1].clone(), mod[:, 2].clone(), mod[:, 3].clone(), mod[:, 4].clone(), mod[:, 5].clone())
    h = _layernorm(x, axis=-1) * (1 + ca) + sa
    x = x + ga * _A_ref(h, A_log_A_real, A_A_imag, A_C_real, A_C_imag, A_log_dt, A_D_skip)
    h = _layernorm(x, axis=-1) * (1 + cb) + sb
    x = x + gb * _B_ref(h, B_w_gate, B_w_up, B_w_down)
    return x
```

```python
import re

TRANS = ('v_exp_f32','v_log_f32','v_rcp_f32','v_rsq_f32','v_sqrt_f32','v_sin_f32','v_cos_f32','v_rcp_iflag_f32','v_exp_f16','v_rcp_f16')
MFMA_PASS = {
 'v_mfma_f32_32x32x16_bf16': 8, 'v_mfma_f32_32x32x16_f16': 8,
 'v_mfma_f32_16x16x32_bf16': 4, 'v_mfma_f32_16x16x32_f16': 4,
}
_reg = re.compile(r'^(-|abs\(|\|)?([vsa])(\d+)\)?\|?$')
_rng = re.compile(r'^(-|abs\(|\|)?([vsa])\[(\d+):(\d+)\]\)?\|?$')

def regs_of(op):
    op = op.strip()
    if op.startswith('-'): op = op[1:]
    if op.startswith('abs(') and op.endswith(')'): op = op[4:-1]
    if op.startswith('|') and op.endswith('|'): op = op[1:-1]
    m = re.match(r'^([vsa])(\d+)$', op)
    if m: return {(m.group(1), int(m.group(2)))}
    m = re.match(r'^([vsa])\[(\d+):(\d+)\]$', op)
    if m: return {(m.group(1), i) for i in range(int(m.group(2)), int(m.group(3))+1)}
    if op == 'vcc': return {('s', 106), ('s', 107)}
    if op == 'vcc_lo': return {('s', 106)}
    if op == 'vcc_hi': return {('s', 107)}
    if op == 'exec': return {('s', 126), ('s', 127)}
    if op == 'm0': return {('s', 124)}
    return set()

class Ins:
    def __init__(self, text):
        self.text = text
        t = text.split(';')[0].strip()
        self.label = t.endswith(':')
        self.directive = t.startswith('.')
        self.op = ''
        self.w = set(); self.r = set()
        self.kind = 'other'
        self.srcC = set(); self.srcAB = set()
        self.dpp = False
        if self.label or self.directive or not t: return
        parts = t.split(None, 1)
        op = parts[0]
        for suf in ('_e32', '_e64', '_dpp', '_sdwa'):
            if op.endswith(suf): op = op[:-len(suf)]
        self.op = op
        rest = parts[1] if len(parts) > 1 else ''
        ops = []; cur = ''; depth = 0
        for ch in rest:
            if ch == '[': depth += 1
            if ch == ']': depth -= 1
            if ch == ',' and depth == 0: ops.append(cur); cur = ''
            else: cur += ch
        ops.append(cur)
        mods = ''
        if ops:
            last = ops[-1].strip().split(None, 1)
            if last:
                ops[-1] = last[0]
                mods = last[1] if len(last) > 1 else ''
        ops = [o.strip() for o in ops]
        self.mods = mods
        R = [regs_of(o) for o in ops]
        allr = set().union(*R) if R else set()
        if op.startswith('v_mfma'):
            self.kind = 'mfma'; self.passes = MFMA_PASS[op]
            self.w = R[0]; self.srcAB = R[1] | R[2]; self.srcC = R[3]; self.r = self.srcAB | self.srcC
        elif op.startswith('v_'):
            self.kind = 'valu'
            self.dpp = any(k in mods for k in ('row_shr','row_shl','row_ror','row_bcast','quad_perm','row_mirror','row_half_mirror','wave_','row_newbcast'))
            if op.startswith('v_permlane') and 'swap' in op:
                self.w = R[0] | R[1]; self.r = R[0] | R[1]
            elif op.startswith('v_cmpx'):
                self.w = R[0] | regs_of('exec'); self.r = set().union(*R[1:])
            elif op in ('v_add_co_u32','v_sub_co_u32','v_addc_co_u32','v_subb_co_u32','v_mad_u64_u32','v_div_scale_f32'):
                self.w = R[0] | R[1]; self.r = set().union(*R[2:])
            else:
                self.w = R[0]; self.r = set().union(*R[1:]) if len(R) > 1 else set()
                if op in ('v_fmac_f32','v_dot2c_f32_bf16','v_pk_fmac_f16','v_writelane_b32') or self.dpp or 'op_sel' in mods and op.startswith('v_cvt'):
                    self.r |= R[0]
            self.trans = op in TRANS
            self.dl = op.startswith('v_dot')
        elif op.startswith('buffer_') or op.startswith('global_') or op.startswith('flat_'):
            self.kind = 'vmem'
            islds = re.search(r'\blds\b', rest) is not None or 'load_lds' in op
            self.ldsdma = islds
            if 'load' in op and not islds:
                self.w = R[0]; self.r = set().union(*R[1:])
            else:
                self.r = allr
                if 'atomic' in op and 'sc0' in mods: self.w = R[0]
            if islds: self.r |= regs_of('m0')
            self.widestore = ('store' in op and ('x4' in op or 'x3' in op))
            self.data = (R[0] if op.startswith('buffer_') else (R[1] if len(R) > 1 else set())) if 'store' in op else set()
        elif op.startswith('ds_'):
            self.kind = 'ds'
            if 'read' in op or 'permute' in op or 'swizzle' in op:
                self.w = R[0]; self.r = set().union(*R[1:])
                if 'd16' in op: self.r |= R[0]
            else:
                self.r = allr
        elif op.startswith('s_'):
            self.kind = 'salu'
            if op in ('s_nop','s_waitcnt','s_barrier','s_endpgm','s_branch','s_setprio','s_sleep') or op.startswith('s_cbranch') or op.startswith('s_cmp'):
                self.r = allr
            elif 'saveexec' in op:
                self.w = R[0] | regs_of('exec'); self.r = set().union(*R[1:]) | regs_of('exec')
            else:
                self.w = R[0] if R else set(); self.r = set().union(*R[1:]) if len(R) > 1 else set()
    def states(self):
        if self.label or self.directive or not self.op: return 0
        if self.op == 's_nop': return int(self.text.split(';')[0].split()[1], 0) + 1
        return 1

def isv(s): return {x for x in s if x[0] in 'va'}
def iss(s): return {x for x in s if x[0] == 's'}

def need(p, c):
    n = 0
    if p.kind == 'valu':
        wv = isv(p.w); ws = iss(p.w)
        if c.kind == 'mfma' and wv & c.r: n = max(n, 2)
        if c.kind == 'valu':
            if wv & c.r:
                if p.trans and not c.trans: n = max(n, 1)
                if p.trans: n = max(n, 1)
                if c.dpp: n = max(n, 2)
                if c.op.startswith('v_permlane'): n = max(n, 2)
                if c.op in ('v_readlane_b32','v_readfirstlane_b32'): n = max(n, 1)
                if 'op_sel' in p.mods and not p.op.startswith('v_pk') or 'dst_sel' in p.mods: n = max(n, 1)
            if p.dl and (wv & (c.r | c.w)):
                if not (c.op == p.op and not (wv & (c.r - c.w))): n = max(n, 3)
            if ws & c.r:
                n = max(n, 4 if c.op in ('v_readlane_b32','v_writelane_b32','v_div_fmas_f32') else 2)
            if ('s',126) in ws:
                if c.dpp: n = max(n, 5)
                if c.op.startswith('v_permlane') or c.op in ('v_readlane_b32','v_readfirstlane_b32','v_writelane_b32'): n = max(n, 4)
        if c.kind == 'mfma' and ('s',126) in ws: n = max(n, 4)
        if c.kind in ('vmem','ds'):
            if ws & c.r: n = max(n, 5)
            if (p.trans or p.dl) and wv & c.r: n = max(n, 3 if p.dl else 1)
        if c.kind == 'salu' and ws & c.r: n = max(n, 1)
    if p.kind == 'mfma':
        big = {4: 8, 8: 12}[p.passes]
        if c.kind == 'mfma':
            if p.w & c.srcAB: n = max(n, big)
            if p.w & c.srcC and not (p.w == c.srcC and p.passes == c.passes): n = max(n, {4: 6, 8: 10}[p.passes])
            if p.w & c.w and not (p.w == c.srcC): n = max(n, {4: 6, 8: 10}[p.passes])
        elif c.kind in ('valu','vmem','ds'):
            if p.w & (c.r | c.w): n = max(n, big)
            if c.kind == 'valu' and p.srcC & c.w: n = max(n, {4: 3, 8: 7}[p.passes])
    if p.kind == 'vmem' and getattr(p, 'widestore', False):
        if p.data & c.w: n = max(n, 2 if c.kind in ('valu','mfma') else 1)
    if p.kind == 'salu':
        if ('s',124) in p.w and c.kind == 'vmem' and getattr(c, 'ldsdma', False): n = max(n, 1)
    return n

class Asm:
    def __init__(self):
        self.L = []
    def __call__(self, text):
        for line in text.split('\n'):
            line = line.strip()
            if line: self.L.append(line)
    def label(self, name): self.L.append(name + ':')
    def finalize(self):
        ins = [Ins(t) for t in self.L]
        out = []
        W = 24
        def pad_for(hist, c):
            best = 0; dist = 0
            for p in reversed(hist):
                if dist >= W: break
                if p.op:
                    k = need(p, c) - dist
                    if k > best: best = k
                dist += p.states()
            return best
        for c in ins:
            if c.op and c.op != 's_nop':
                k = pad_for(out, c)
                while k > 0:
                    q = min(k, 16)
                    out.append(Ins('s_nop %d' % (q-1))); k -= q
            out.append(c)
        labels = {i.text.split(';')[0].strip()[:-1]: n for n, i in enumerate(out) if i.label}
        extra = {}
        for n, i in enumerate(out):
            if i.op == 's_branch' or i.op.startswith('s_cbranch'):
                tgt = i.text.split(';')[0].split()[1]
                if tgt not in labels: continue
                hist = out[max(0, n-W):n+1]
                worst = 0
                h2 = list(hist)
                for c in out[labels[tgt]:labels[tgt]+W]:
                    if c.op:
                        dist = sum(x.states() for x in h2[len(hist):])
                        d = dist
                        for p in reversed(hist):
                            if p.op:
                                k = need(p, c) - d
                                if k > worst: worst = k
                            d += p.states()
                    h2.append(c)
                if worst > 0: extra[n] = worst
        res = []
        for n, i in enumerate(out):
            if n in extra:
                k = extra[n]
                while k > 0:
                    q = min(k, 16); res.append('s_nop %d' % (q-1)); k -= q
            res.append(i.text)
        return '\n'.join(('' if (t.endswith(':') or t.startswith('.')) else '    ') + t for t in res)

def kd(name, vgpr, sgpr, accum=None):
    if accum is None: accum = (vgpr + 3)//4*4
    return f""".amdhsa_kernel {name}
  .amdhsa_next_free_vgpr {vgpr}
  .amdhsa_next_free_sgpr {sgpr}
  .amdhsa_accum_offset {accum}
  .amdhsa_group_segment_fixed_size 0
  .amdhsa_kernarg_size 128
  .amdhsa_user_sgpr_count 2
  .amdhsa_user_sgpr_kernarg_segment_ptr 1
  .amdhsa_system_sgpr_workgroup_id_x 1
.end_amdhsa_kernel"""
```

```python
from asmlib import Asm, kd
from gen import *
import struct
def fbits(x): return struct.unpack('<I', struct.pack('<f', float(x)))[0]

K1_KST = 4640; K1_U = 8*K1_KST; K1_UST = 4224; K1_EX = K1_U + 2*K1_UST; K1_LDS = K1_EX + 32768
def gen_k1():
    a = Asm()
    head(a, 'k1_kernel')
    load_args(a)
    a("s_cmp_ge_u32 s2, 256")
    a("s_cbranch_scc1 K1_B")
    code_prefetch(a, 1, 70)
    a("s_and_b32 s40, s2, 7")
    a("s_lshl_b32 s40, s40, 5")
    a("s_lshr_b32 s41, s2, 3")
    a("s_add_u32 s40, s40, s41")
    a("s_lshl_b32 s42, s40, 5")
    a("v_lshl_add_u32 v1, v0, 13, s42")
    a("v_lshlrev_b32 v2, 6, v0")
    a("v_lshrrev_b32 v4, 6, v0")
    a("v_and_b32 v5, 63, v0")
    a("v_readfirstlane_b32 s41, v4")
    a("v_lshlrev_b32 v3, 4, v5")
    a("s_waitcnt lgkmcnt(0)")
    a("global_load_dwordx4 v[8:11], v1, s[38:39]")
    a("global_load_dwordx4 v[12:15], v1, s[38:39] offset:16")
    ws_base(a, 44, ST1)
    for i in range(4): a(f"global_load_dwordx4 v[{16+4*i}:{19+4*i}], v2, s[44:45] offset:{16*i}")
    a("s_lshl_b32 s42, s40, 3")
    a(f"s_add_u32 s42, s42, {MOD:#x}")
    a("s_add_u32 s46, s38, s42")
    a("s_addc_u32 s47, s39, 0")
    a("s_load_dwordx2 s[60:61], s[46:47], 0")
    a("s_load_dwordx2 s[62:63], s[46:47], 2048")
    a("s_load_dwordx2 s[64:65], s[46:47], 4096")
    a("s_lshl_b32 s42, s40, 2")
    a("s_load_dword s66, s[20:21], s42")
    srd(a, 52, 38, KR, 512*9216)
    a("s_lshr_b32 s42, s41, 1")
    a("s_lshl_b32 s43, s40, 1")
    a("s_add_u32 s43, s43, s42")
    a("s_mul_i32 s56, s43, 9216")
    a("s_and_b32 s43, s41, 1")
    a("s_lshl_b32 s48, s43, 2")
    a("s_sub_u32 s56, s56, s48")
    a("s_add_u32 s56, s56, 4")
    a("s_add_u32 s57, s56, 4608")
    a(f"s_mul_i32 s58, s41, {2*K1_KST}")
    for e in range(2):
        a(f"s_add_u32 m0, s58, {e*K1_KST}")
        for i in range(4):
            a(f"buffer_load_dwordx4 v3, s[52:55], s{56+e} offen offset:{i*1024} lds")
    a("s_add_u32 s56, s56, 4096")
    a("s_add_u32 s57, s57, 4096")
    a("s_mov_b64 exec, 0xffffff")
    for e in range(2):
        a(f"s_add_u32 m0, s58, {e*K1_KST+4096}")
        a(f"buffer_load_dwordx4 v3, s[52:55], s{56+e} offen lds")
    a("s_mov_b64 exec, -1")
    a("v_mov_b32 v72, 0")
    a("v_lshrrev_b32 v6, 5, v5")
    a(f"v_mul_u32_u24 v6, {K1_UST}, v6")
    a("v_and_b32 v7, 31, v0")
    a("v_lshl_add_u32 v6, v7, 2, v6")
    a(f"ds_write_b32 v6, v72 offset:{K1_U}")
    ACC = 136; F = 72; G = 104
    for i in range(32): a(f"v_mov_b32 v{ACC+i}, 0")
    a("v_and_b32 v6, 3, v0")
    a(f"v_mul_u32_u24 v6, {K1_KST}, v6")
    a("v_bfe_u32 v7, v0, 2, 2")
    a("v_lshlrev_b32 v7, 7, v7")
    a("v_sub_u32 v6, v6, v7")
    a("v_bfe_u32 v4, v0, 4, 2")
    a("v_lshl_add_u32 v6, v4, 4, v6")
    a(f"s_mul_i32 s48, s42, {4*K1_KST}")
    a("s_lshl_b32 s49, s43, 8")
    a("s_sub_u32 s48, s48, s49")
    a("s_add_u32 s48, s48, 832")
    a("v_add_u32 v6, s48, v6")
    a("v_and_b32 v7, 15, v0")
    a("v_lshlrev_b32 v7, 3, v7")
    a("v_lshl_add_u32 v7, v4, 4, v7")
    a(f"s_mul_i32 s48, s42, {K1_UST}")
    a("s_sub_u32 s48, s48, s49")
    a(f"s_add_u32 s48, s48, {K1_U + 456}")
    a("v_add_u32 v7, s48, v7")
    a("v_lshlrev_b32 v2, 4, v0")
    a("s_waitcnt lgkmcnt(0)")
    a("v_mov_b32 v64, s60")
    a("v_mov_b32 v65, s61")
    a("s_lshl_b32 s67, s66, 16")
    a("s_and_b32 s68, s66, 0xffff0000")
    a("v_mov_b32 v66, s67")
    a("v_mov_b32 v67, s68")
    a("v_mul_f32 v66, s64, v66")
    a("v_mul_f32 v67, s65, v67")
    a("s_waitcnt vmcnt(10)")
    for ch in range(2):
        for q in range(4):
            a(f"v_lshlrev_b32 v{32+8*ch+2*q}, 16, v{8+4*ch+q}")
            a(f"v_and_b32 v{33+8*ch+2*q}, 0xffff0000, v{8+4*ch+q}")
        for l in range(8): a(f"v_fma_f32 v{48+8*ch+l}, v{32+8*ch+l}, v{16+2*l}, v{17+2*l}")
        for l in range(8): a(f"v_fma_f32 v{48+8*ch+l}, v{48+8*ch+l}, s{62+ch}, v{64+ch}")
        for q in range(4): a(f"v_cvt_pk_bf16_f32 v{8+4*ch+q}, v{48+8*ch+2*q}, v{49+8*ch+2*q}")
        a(f"ds_write_b128 v2, v[{8+4*ch}:{11+4*ch}] offset:{K1_U + ch*K1_UST + 128}")
    a("s_waitcnt vmcnt(0) lgkmcnt(0)")
    a("s_barrier")
    def rdG(j):
        a(f"ds_read_b64 v[{G+4*j}:{G+4*j+1}], v7 offset:{512*j}")
        a(f"ds_read_b64 v[{G+4*j+2}:{G+4*j+3}], v7 offset:{512*j+8}")
    def rdF(i):
        a(f"ds_read_b128 v[{F+4*i}:{F+4*i+3}], v6 offset:{512*(7-i)}")
    for j in range(7, 0, -1): rdG(j)
    for i in range(8): rdF(i)
    rdG(0)
    for ch in range(2):
        for l in range(8): a(f"v_fmac_f32 v{32+8*ch+l}, v{48+8*ch+l}, v{66+ch}")
    a("s_mov_b32 s48, 0")
    a(".p2align 3")
    a.label("K1_loop")
    a("v_subrev_u32 v6, 64, v6")
    a("v_subrev_u32 v7, 64, v7")
    waits = {7: 9, 6: 10, 5: 11, 4: 12, 3: 13, 2: 14, 1: 15, 0: 14}
    for j in range(7, -1, -1):
        a(f"s_waitcnt lgkmcnt({waits[j]})")
        a("s_nop 0")
        for i in range(8-j):
            c = ACC + 4*(i+j)
            a(f"v_mfma_f32_16x16x32_bf16 v[{c}:{c+3}], v[{F+4*i}:{F+4*i+3}], v[{G+4*j}:{G+4*j+3}], v[{c}:{c+3}]")
            if j == 0: rdF(i)
        rdG(j)
    a("s_add_u32 s48, s48, 1")
    a("s_cmp_lt_u32 s48, 4")
    a("s_cbranch_scc1 K1_loop")
    a("s_lshl_b32 s48, s41, 13")
    a("v_add_u32 v3, s48, v3")
    a("v_lshlrev_b32 v2, 5, v0")
    a("s_waitcnt lgkmcnt(0)")
    for t in range(8):
        a(f"ds_write_b128 v3, v[{ACC+4*t}:{ACC+4*t+3}] offset:{K1_EX + 1024*t}")
    ws_base(a, 44, X1T)
    a("v_lshrrev_b32 v1, 2, v0")
    a("v_lshlrev_b32 v1, 15, v1")
    a("v_and_b32 v4, 3, v0")
    a("v_lshl_add_u32 v1, v4, 4, v1")
    a("s_lshl_b32 s42, s40, 7")
    a("v_add_u32 v1, s42, v1")
    a(f"v_add_u32 v2, {K1_EX}, v2")
    a("s_waitcnt lgkmcnt(0)")
    a("s_barrier")
    for w in range(4):
        for q in range(2):
            r = 72 + 8*w + 4*q
            a(f"ds_read_b128 v[{r}:{r+3}], v2 offset:{8192*w + 16*q}")
    for ch in range(2):
        a(f"s_waitcnt lgkmcnt({4 if ch == 0 else 0})")
        for l in range(8): a(f"v_add_f32 v{72+16*ch+l}, v{72+16*ch+l}, v{80+16*ch+l}")
        for l in range(8): a(f"v_fmac_f32 v{32+8*ch+l}, s{64+ch}, v{72+16*ch+l}")
        for q in range(4): a(f"v_cvt_pk_bf16_f32 v{8+4*ch+q}, v{32+8*ch+2*q}, v{33+8*ch+2*q}")
        a(f"global_store_dwordx4 v1, v[{8+4*ch}:{11+4*ch}], s[44:45] offset:{64*ch}")
    a("s_endpgm")
    a.label("K1_B")
    a("s_sub_u32 s40, s2, 256")
    a("s_and_b32 s41, s40, 3")
    a("s_bfe_u32 s42, s40, 0x10002")
    a("s_mul_i32 s42, s42, 22")
    a("s_lshr_b32 s43, s40, 3")
    a("s_cmp_ge_u32 s43, 22")
    a("s_cbranch_scc1 K1_end")
    a("s_add_u32 s42, s42, s43")
    a("s_cmp_ge_u32 s42, 43")
    a("s_cbranch_scc1 K1_end")
    code_prefetch(a, 1, 167)
    a("v_lshrrev_b32 v4, 6, v0")
    a("v_and_b32 v1, 15, v0")
    a("v_readfirstlane_b32 s43, v4")
    a("v_bfe_u32 v2, v0, 4, 2")
    a("s_and_b32 s48, s43, 1")
    a("s_lshr_b32 s49, s43, 1")
    a("s_lshl_b32 s50, s41, 4")
    a("s_lshl_b32 s51, s49, 2")
    a("s_add_u32 s50, s50, s51")
    a("v_add_u32 v3, s50, v2")
    a("v_mul_u32_u24 v4, 22016, v3")
    a("v_lshl_add_u32 v4, v1, 2, v4")
    a("s_lshl_b32 s51, s42, 6")
    a("v_add_u32 v4, s51, v4")
    a("v_lshlrev_b32 v5, 5, v3")
    a("s_waitcnt lgkmcnt(0)")
    a("s_cmp_eq_u32 s48, 0")
    a("s_cselect_b32 s44, s24, s26")
    a("s_cselect_b32 s45, s25, s27")
    a(f"s_mov_b32 s46, {512*2752}")
    a("s_mov_b32 s47, 0x20000")
    ws_base(a, 56, MOD + 3*2048)
    for t in range(2):
        for i in range(8):
            a(f"s_mov_b32 s52, {t*176128 + i*2752}")
            a(f"buffer_load_dword v{8+8*t+i}, v4, s[44:47], s52 offen")
        for q in range(2):
            a(f"global_load_dwordx4 v[{24+16*t+4*q}:{27+16*t+4*q}], v5, s[56:57] offset:{256*t+16*q}")
            a(f"global_load_dwordx4 v[{32+16*t+4*q}:{35+16*t+4*q}], v5, s[56:57] offset:{2048+256*t+16*q}")
    ws_base(a, 58, WGU)
    ws_base(a, 60, PQ)
    a("s_mov_b32 s55, 0x3f803f80")
    a("v_lshrrev_b32 v6, 3, v1")
    a("s_lshl_b32 s51, s42, 1")
    a("v_add_u32 v6, s51, v6")
    a("v_and_b32 v7, 7, v0")
    a("v_lshlrev_b32 v56, 15, v6")
    a("v_lshl_add_u32 v56, v3, 9, v56")
    a("v_lshl_add_u32 v56, v7, 5, v56")
    a("s_lshl_b32 s51, s48, 8")
    a("v_add_u32 v56, s51, v56")
    a("v_add_u32 v57, 4096, v56")
    a("v_lshlrev_b32 v58, 6, v6")
    a("v_and_b32 v59, 1, v2")
    a("v_lshl_add_u32 v58, v59, 5, v58")
    a("v_lshl_add_u32 v58, v7, 1, v58")
    a("v_lshrrev_b32 v59, 1, v2")
    a("v_add_u32 v58, v58, v59")
    a("s_lshl_b32 s51, s48, 4")
    a("v_add_u32 v58, s51, v58")
    a("v_lshlrev_b32 v58, 5, v58")
    a("s_lshl_b32 s51, s41, 1")
    a("s_add_u32 s51, s51, s49")
    a("s_lshl_b32 s51, s51, 2")
    a("v_add_u32 v58, s51, v58")
    for i in range(4): a(f"v_mov_b32 v{60+i}, 0")
    for t in range(2):
        a(f"s_waitcnt vmcnt({12 if t == 0 else 2})")
        for i in range(8):
            a(f"v_lshlrev_b32 v{64+i}, 16, v{8+8*t+i}")
            a(f"v_and_b32 v{72+i}, 0xffff0000, v{8+8*t+i}")
        for i in range(8):
            a(f"v_fmac_f32 v62, v{24+16*t+i}, v{64+i}")
            a(f"v_fmac_f32 v63, v{24+16*t+i}, v{72+i}")
        for i in range(8):
            a(f"v_mul_f32 v{64+i}, v{32+16*t+i}, v{64+i}")
            a(f"v_mul_f32 v{72+i}, v{32+16*t+i}, v{72+i}")
        o = 80 + 8*t
        for q in range(8): a(f"v_cvt_pk_bf16_f32 v{o+q}, v{64+2*q}, v{65+2*q}")
        a(f"global_store_dwordx4 v{56+t}, v[{o}:{o+3}], s[58:59]")
        a(f"global_store_dwordx4 v{56+t}, v[{o+4}:{o+7}], s[58:59] offset:16")
        for q in range(4):
            a(f"v_dot2_f32_bf16 v60, v{o+q}, s55, v60")
            a(f"v_dot2_f32_bf16 v61, v{o+4+q}, s55, v61")
    a("v_permlane32_swap_b32 v60, v61")
    a("v_permlane32_swap_b32 v62, v63")
    a("v_add_f32 v60, v60, v61")
    a("v_add_f32 v62, v62, v63")
    a("v_permlane16_swap_b32 v60, v62")
    a("v_add_f32 v60, v60, v62")
    a("global_store_dword v58, v60, s[60:61]")
    a.label("K1_end")
    a("s_endpgm")
    return a.finalize(), kd('k1_kernel', 168, 72)

K2_SLOT = 20480; K2_NS = 7; K2_PQ = K2_SLOT*K2_NS; K2_STP = K2_PQ + 1024; K2_STF = K2_STP + 3072; K2_LDS = K2_STF + 2048
def gen_k2():
    a = Asm()
    head(a, 'k2_kernel')
    a("s_load_dwordx2 s[38:39], s[0:1], 120")
    a("s_and_b32 s40, s2, 7")
    a("s_lshr_b32 s41, s2, 3")
    a("s_cmp_ge_u32 s41, 31")
    a("s_cbranch_scc1 K2_end")
    a("s_mul_i32 s40, s40, 31")
    a("s_add_u32 s40, s40, s41")
    a("s_cmp_ge_u32 s40, 242")
    a("s_cbranch_scc1 K2_end")
    code_prefetch(a, 1, 255)
    a("s_cmp_lt_u32 s40, 132")
    a("s_cselect_b32 s42, 0, 132")
    a("s_cselect_b32 s43, 6, 5")
    a("s_movk_i32 s44, 13108")
    a("s_cselect_b32 s44, 10923, s44")
    a("s_cselect_b32 s45, 0, 6")
    a("s_sub_u32 s40, s40, s42")
    a("s_mul_i32 s41, s40, s44")
    a("s_lshr_b32 s41, s41, 16")
    a("s_mul_i32 s42, s41, s43")
    a("s_sub_u32 s40, s40, s42")
    a("s_add_u32 s40, s40, s45")
    a("v_lshrrev_b32 v4, 6, v0")
    a("v_and_b32 v5, 63, v0")
    a("v_readfirstlane_b32 s43, v4")
    a("v_lshlrev_b32 v3, 4, v5")
    a("v_bfe_u32 v6, v0, 5, 1")
    a("v_lshlrev_b32 v6, 9, v6")
    a("v_bfe_u32 v7, v0, 2, 2")
    a("v_lshl_add_u32 v6, v7, 6, v6")
    a("v_bfe_u32 v7, v0, 4, 1")
    a("v_lshl_add_u32 v6, v7, 5, v6")
    a("v_and_b32 v7, 3, v0")
    a("v_lshl_add_u32 v6, v7, 3, v6")
    a("s_and_b32 s44, s43, 3")
    a("s_lshl_b32 s45, s41, 2")
    a("s_add_u32 s45, s45, s44")
    a("s_mul_i32 s46, s40, 6")
    a("s_cmp_ge_u32 s43, 4")
    a("s_cbranch_scc0 K2_comp")
    a("s_mul_i32 s47, s44, 3")
    for b in range(3):
        a(f"s_add_u32 s48, s47, {b}")
        a("s_lshr_b32 s49, s48, 1")
        a("s_add_u32 s49, s49, s46")
        a("s_lshl_b32 s49, s49, 15")
        a("s_and_b32 s48, s48, 1")
        a("s_lshl_b32 s48, s48, 10")
        a("s_add_u32 s49, s49, s48")
        a(f"s_sub_u32 s49, s49, {b*1024}")
        a(f"v_add_u32 v{8+b}, s49, v3")
    a("s_lshl_b32 s49, s45, 15")
    a("v_add_u32 v11, s49, v3")
    a("s_lshl_b32 s49, s45, 11")
    a("v_lshl_add_u32 v12, v5, 5, s49")
    a("s_lshl_b32 s60, s47, 10")
    a("s_lshl_b32 s61, s44, 11")
    a("s_add_u32 s61, s61, 12288")
    a("s_waitcnt lgkmcnt(0)")
    srd(a, 48, 38, X1T, 0x200000)
    srd(a, 52, 38, WGU, 86*32768)
    srd(a, 56, 38, PQ, 86*2048)
    a("buffer_load_dwordx4 v[16:19], v12, s[56:59], 0 offen")
    a("buffer_load_dwordx4 v[20:23], v12, s[56:59], 0 offen offset:16")
    a("s_mov_b32 s62, 0")
    a("s_mov_b32 s63, 0")
    def issue():
        a("s_add_u32 m0, s63, s61")
        a("s_cmp_lt_u32 s62, 32768")
        a("s_cselect_b32 s64, s62, 0x10000000")
        a("buffer_load_dwordx4 v11, s[52:55], s64 offen lds")
        a("buffer_load_dwordx4 v11, s[52:55], s64 offen offset:1024 lds")
        a("s_add_u32 m0, s63, s60")
        a("s_add_u32 s62, s62, 2048")
        for b in range(3):
            a(f"buffer_load_dwordx4 v{8+b}, s[48:51], s64 offen offset:{b*1024} lds")
        a(f"s_add_u32 s63, s63, {K2_SLOT}")
        a(f"s_cmp_ge_u32 s63, {K2_SLOT*K2_NS}")
        a("s_cselect_b32 s63, 0, s63")
    a.label("K2_lpro")
    issue()
    a(f"s_cmp_lt_u32 s62, {2048*(K2_NS-1)}")
    a("s_cbranch_scc1 K2_lpro")
    a("s_mov_b32 s66, 0x3f803f80")
    a("v_add_u32 v13, s60, v6")
    for i in range(6): a(f"v_mov_b32 v{40+i}, 0")
    a(f"s_waitcnt vmcnt({5*(K2_NS-1)})")
    for i in range(4): a(f"v_add_f32 v{16+i}, v{16+i}, v{20+i}")
    a("v_add_f32 v16, v16, v17")
    a("v_add_f32 v18, v18, v19")
    a("v_add_f32 v16, v16, v18")
    a("s_lshl_b32 s65, s44, 8")
    a("v_lshl_add_u32 v14, v5, 2, s65")
    a(f"v_add_u32 v14, {K2_PQ}, v14")
    a("ds_write_b32 v14, v16")
    a("s_mov_b32 s65, 0")
    a("s_mov_b32 s67, 0")
    a(".p2align 3")
    a.label("K2_lloop")
    a(f"s_waitcnt vmcnt({5*(K2_NS-2)}) lgkmcnt(0)")
    a("s_barrier")
    issue()
    a("v_add_u32 v15, s67, v13")
    for b in range(3):
        a(f"ds_read_b64_tr_b16 v[{24+4*b}:{25+4*b}], v15 offset:{b*1024}")
        a(f"ds_read_b64_tr_b16 v[{26+4*b}:{27+4*b}], v15 offset:{b*1024+256}")
    a(f"s_add_u32 s67, s67, {K2_SLOT}")
    a(f"s_cmp_ge_u32 s67, {K2_SLOT*K2_NS}")
    a("s_cselect_b32 s67, 0, s67")
    a("s_waitcnt lgkmcnt(0)")
    for q in range(4):
        for b in range(3):
            a(f"v_dot2_f32_bf16 v{40+2*b}, v{24+4*b+q}, s66, v{40+2*b}")
            a(f"v_dot2_f32_bf16 v{41+2*b}, v{24+4*b+q}, v{24+4*b+q}, v{41+2*b}")
    a("s_add_u32 s65, s65, 1")
    a("s_cmp_lt_u32 s65, 16")
    a("s_cbranch_scc1 K2_lloop")
    a("s_mul_i32 s65, s44, 768")
    a("v_lshl_add_u32 v14, v5, 2, s65")
    a(f"v_add_u32 v14, {K2_STP}, v14")
    for b in range(3):
        a(f"v_permlane32_swap_b32 v{40+2*b}, v{41+2*b}")
    for b in range(3):
        a(f"v_add_f32 v{40+2*b}, v{40+2*b}, v{41+2*b}")
        a(f"ds_write_b32 v14, v{40+2*b} offset:{256*b}")
    a("v_and_b32 v16, 0xff, v0")
    a("v_lshrrev_b32 v17, 5, v16")
    a("v_lshlrev_b32 v17, 9, v17")
    a("v_and_b32 v18, 31, v0")
    a("v_lshl_add_u32 v17, v18, 2, v17")
    a(f"v_add_u32 v17, {K2_STP}, v17")
    a("v_lshlrev_b32 v16, 3, v16")
    a(f"v_add_u32 v16, {K2_STF}, v16")
    a("s_waitcnt lgkmcnt(0)")
    a("s_barrier")
    a("ds_read2_b32 v[20:21], v17 offset0:0 offset1:64")
    a("ds_read2_b32 v[22:23], v17 offset0:32 offset1:96")
    a("s_waitcnt lgkmcnt(0)")
    a("v_add_f32 v20, v20, v21")
    a("v_add_f32 v21, v22, v23")
    stats_finalize(a, 20, 21, 22, 23, 24)
    a("ds_write_b64 v16, v[22:23]")
    a("s_waitcnt vmcnt(0) lgkmcnt(0)")
    a("s_barrier")
    a("s_endpgm")
    a.label("K2_comp")
    ACC = 64; S0 = 8; S1 = 36; PQR = 160; STR = 192
    for i in range(96): a(f"v_mov_b32 v{ACC+i}, 0")
    a("s_lshl_b32 s47, s44, 11")
    a("s_add_u32 s47, s47, 12288")
    a("v_add_u32 v7, s47, v3")
    a("v_mov_b32 v1, v6")
    a("v_mov_b32 v2, v7")
    a("s_mov_b32 s65, 0")
    a("s_mov_b32 s67, 0")
    def rd_w(S, ksub): a(f"ds_read_b128 v[{S}:{S+3}], v2 offset:{ksub*1024}")
    def rd_x(S, ksub, nt):
        r = S + 4 + 4*nt
        a(f"ds_read_b64_tr_b16 v[{r}:{r+1}], v1 offset:{nt*2048+ksub*1024}")
        a(f"ds_read_b64_tr_b16 v[{r+2}:{r+3}], v1 offset:{nt*2048+ksub*1024+256}")
    def mf(S, nt):
        c = ACC + 16*nt; r = S + 4 + 4*nt
        a(f"v_mfma_f32_32x32x16_bf16 v[{c}:{c+15}], v[{S}:{S+3}], v[{r}:{r+3}], v[{c}:{c+15}]")
    a("s_waitcnt lgkmcnt(0)")
    a("s_barrier")
    rd_w(S0, 0)
    for nt in range(6): rd_x(S0, 0, nt)
    a("s_waitcnt lgkmcnt(0)")
    a(".p2align 3")
    a.label("K2_cloop")
    rd_w(S1, 1)
    for nt in range(6):
        if nt < 4: pass
        mf(S0, nt)
        if nt < 3:
            rd_x(S1, 1, 2*nt); rd_x(S1, 1, 2*nt+1)
        if nt == 3:
            a(f"s_add_u32 s67, s67, {K2_SLOT}")
            a(f"s_cmp_ge_u32 s67, {K2_SLOT*K2_NS}")
            a("s_cselect_b32 s67, 0, s67")
            a("s_add_u32 s65, s65, 1")
            a("v_add_u32 v1, s67, v6")
            a("v_add_u32 v2, s67, v7")
    a("s_waitcnt lgkmcnt(0)")
    a("s_barrier")
    rd_w(S0, 0)
    for nt in range(6):
        mf(S1, nt)
        if nt < 3:
            rd_x(S0, 0, 2*nt); rd_x(S0, 0, 2*nt+1)
    a("s_cmp_lt_u32 s65, 16")
    a("s_waitcnt lgkmcnt(0)")
    a("s_cbranch_scc1 K2_cloop")
    a("v_bfe_u32 v1, v0, 5, 1")
    a("v_lshlrev_b32 v1, 4, v1")
    a("s_lshl_b32 s47, s44, 8")
    a(f"s_add_u32 s47, s47, {K2_PQ}")
    a("v_add_u32 v1, s47, v1")
    for pq in range(2):
        for q in range(4):
            r = PQR + 16*pq + 4*q
            a(f"ds_read_b128 v[{r}:{r+3}], v1 offset:{pq*128+q*32}")
    a("v_and_b32 v2, 31, v0")
    a("v_lshlrev_b32 v2, 3, v2")
    a(f"v_add_u32 v2, {K2_STF}, v2")
    srd(a, 48, 38, HH, 64*86*1024)
    a("s_mul_i32 s46, s46, 86")
    a("s_add_u32 s46, s46, s45")
    a("s_lshl_b32 s46, s46, 10")
    K1c = -2.0*1.4426950408889634*0.7978845608028654
    a(f"v_mov_b32 v8, {fbits(K1c*0.044715):#x}")
    a(f"v_mov_b32 v9, {fbits(K1c):#x}")
    a("v_mov_b32 v10, 1.0")
    a("v_mov_b32 v11, 1.0")
    a("s_barrier")
    a("s_cmp_ge_u32 s45, 86")
    a("s_cbranch_scc1 K2_end")
    for nt in range(6): a(f"ds_read_b64 v[{STR+2*nt}:{STR+2*nt+1}], v2 offset:{256*nt}")
    a("s_waitcnt lgkmcnt(0)")
    for nt in range(6):
        c = ACC + 16*nt; s = STR + 2*nt; T = 12
        for q in range(8):
            a(f"v_pk_fma_f32 v[{T+2*q}:{T+2*q+1}], v[{PQR+2*q}:{PQR+2*q+1}], v[{s}:{s+1}], v[{PQR+16+2*q}:{PQR+17+2*q}] op_sel:[0,1,0] op_sel_hi:[1,1,1]")
        for q in range(8):
            a(f"v_pk_fma_f32 v[{c+2*q}:{c+2*q+1}], v[{c+2*q}:{c+2*q+1}], v[{s}:{s+1}], v[{T+2*q}:{T+2*q+1}] op_sel:[0,0,0] op_sel_hi:[1,0,1]")
        for q in range(4): a(f"v_pk_mul_f32 v[{T+2*q}:{T+2*q+1}], v[{c+2*q}:{c+2*q+1}], v[{c+2*q}:{c+2*q+1}]")
        for q in range(4): a(f"v_pk_fma_f32 v[{T+2*q}:{T+2*q+1}], v[{T+2*q}:{T+2*q+1}], v[8:9], v[8:9] op_sel:[0,0,1] op_sel_hi:[1,0,1]")
        for q in range(4): a(f"v_pk_mul_f32 v[{T+2*q}:{T+2*q+1}], v[{T+2*q}:{T+2*q+1}], v[{c+2*q}:{c+2*q+1}]")
        for q in range(8): a(f"v_exp_f32 v{T+q}, v{T+q}")
        for q in range(4): a(f"v_pk_mul_f32 v[{c+2*q}:{c+2*q+1}], v[{c+2*q}:{c+2*q+1}], v[{c+8+2*q}:{c+9+2*q}]")
        for q in range(4): a(f"v_pk_add_f32 v[{T+2*q}:{T+2*q+1}], v[{T+2*q}:{T+2*q+1}], v[10:11]")
        for q in range(8): a(f"v_rcp_f32 v{T+q}, v{T+q}")
        for q in range(4): a(f"v_pk_mul_f32 v[{c+2*q}:{c+2*q+1}], v[{c+2*q}:{c+2*q+1}], v[{T+2*q}:{T+2*q+1}]")
        for q in range(4): a(f"v_cvt_pk_bf16_f32 v{c+8+q}, v{c+2*q}, v{c+2*q+1}")
        a(f"buffer_store_dwordx4 v[{c+8}:{c+11}], v3, s[48:51], s46 offen")
        a(f"s_add_u32 s46, s46, {86*1024}")
    a.label("K2_end")
    a("s_endpgm")
    return a.finalize(), kd('k2_kernel', 256, 80)

K3_X = 49152; K3_LDS = K3_X + 8192
def gen_k3():
    a = Asm()
    head(a, 'k3_kernel')
    a("s_load_dwordx2 s[38:39], s[0:1], 120")
    a("s_load_dwordx2 s[34:35], s[0:1], 104")
    a("s_cmp_ge_u32 s2, 256")
    a("s_cbranch_scc1 K3_end")
    code_prefetch(a, 1, 127)
    a("s_bfe_u32 s40, s2, 0x20001")
    a("s_lshl_b32 s40, s40, 3")
    a("s_lshr_b32 s41, s2, 5")
    a("s_add_u32 s40, s40, s41")
    a("s_and_b32 s41, s2, 1")
    a("s_lshl_b32 s41, s41, 2")
    a("s_bfe_u32 s42, s2, 0x20003")
    a("s_add_u32 s41, s41, s42")
    a("v_lshrrev_b32 v4, 6, v0")
    a("v_and_b32 v5, 63, v0")
    a("v_readfirstlane_b32 s43, v4")
    a("v_lshlrev_b32 v3, 4, v5")
    a("s_and_b32 s44, s43, 1")
    a("s_lshr_b32 s45, s43, 1")
    a("s_lshl_b32 s46, s41, 1")
    a("s_add_u32 s46, s46, s44")
    a("s_lshl_b32 s47, s40, 1")
    a("s_add_u32 s47, s47, s45")
    a("s_xor_b32 s60, s46, 1")
    a("s_xor_b32 s61, s47, 1")
    for r, s in ((8, 46), (9, 60), (10, 47), (11, 61)):
        a(f"s_mul_i32 s62, s{s}, {86*1024}")
        a(f"v_add_u32 v{r}, s62, v3")
    a("s_lshl_b32 s62, s43, 10")
    a("s_waitcnt lgkmcnt(0)")
    srd(a, 48, 38, WD, 16*86*1024)
    srd(a, 52, 38, HH, 64*86*1024)
    NR = 11
    def ld(i):
        r = 16*(i % NR)
        if i == 21:
            a("s_cmp_lt_u32 s43, 2")
            a("s_cselect_b32 s62, s62, 0x10000000")
        a(f"buffer_load_dwordx4 a[{r}:{r+3}], v8, s[48:51], s62 offen")
        a(f"buffer_load_dwordx4 a[{r+8}:{r+11}], v10, s[52:55], s62 offen")
        a(f"buffer_load_dwordx4 a[{r+4}:{r+7}], v9, s[48:51], s62 offen")
        a(f"buffer_load_dwordx4 a[{r+12}:{r+15}], v11, s[52:55], s62 offen")
        a("s_add_u32 s62, s62, 4096")
    srd(a, 56, 38, X1T, 0x200000)
    a("s_lshl_b32 s63, s47, 15")
    a("s_lshl_b32 s64, s46, 11")
    a("s_add_u32 s63, s63, s64")
    a("s_lshl_b32 s64, s43, 11")
    a(f"s_add_u32 m0, s64, {K3_X}")
    a("s_lshl_b32 s65, s46, 7")
    a(f"s_add_u32 s65, s65, {MOD + 5*2048:#x}")
    a("buffer_load_dwordx4 v3, s[56:59], s63 offen lds")
    a("buffer_load_dwordx4 v3, s[56:59], s63 offen offset:1024 lds")
    a("v_bfe_u32 v6, v0, 5, 1")
    a("v_lshl_add_u32 v7, v6, 4, s65")
    for q in range(4): a(f"global_load_dwordx4 v[{16+4*q}:{19+4*q}], v7, s[38:39] offset:{32*q}")
    for i in range(NR): ld(i)
    ACC = 64
    def mf(i):
        r = 16*(i % NR)
        for aa in range(4):
            A = r + 4*(aa & 1); B = r + 8 + 4*(aa >> 1); c = ACC + 16*aa
            cc = "0" if i == 0 else f"v[{c}:{c+15}]"
            a(f"v_mfma_f32_32x32x16_bf16 v[{c}:{c+15}], a[{A}:{A+3}], a[{B}:{B+3}], {cc}")
    a("v_lshlrev_b32 v12, 8, v6")
    a("v_bfe_u32 v13, v0, 2, 2")
    a("v_lshl_add_u32 v12, v13, 6, v12")
    a("v_bfe_u32 v13, v0, 4, 1")
    a("v_lshl_add_u32 v12, v13, 5, v12")
    a("v_and_b32 v13, 3, v0")
    a("v_lshl_add_u32 v12, v13, 3, v12")
    a("v_add_u32 v12, s64, v12")
    for i in range(22):
        later = min(21, i + NR - 1) - i
        a(f"s_waitcnt vmcnt({4*later})")
        if i == 0:
            for q in range(4): a(f"ds_read_b64_tr_b16 v[{32+2*q}:{33+2*q}], v12 offset:{K3_X + 512*q}")
        mf(i)
        if i + NR < 22: ld(i + NR)
        if i == 1:
            a("s_waitcnt lgkmcnt(0)")
            for q in range(8):
                a(f"v_lshlrev_b32 v{40+2*q}, 16, v{32+q}")
                a(f"v_and_b32 v{41+2*q}, 0xffff0000, v{32+q}")
        if i == 2:
            for aa in range(1, 4):
                a(f"s_xor_b32 s66, s43, {aa}")
                a("s_mul_i32 s66, s66, 12288")
                a(f"s_add_u32 s66, s66, {(aa-1)*4096}")
                a(f"v_add_u32 v{12+aa}, s66, v3")
            a("s_mul_i32 s66, s43, 12288")
            a("v_add_u32 v12, s66, v3")
            a("v_and_b32 v1, 31, v0")
            a("v_lshlrev_b32 v1, 10, v1")
            a("v_lshl_add_u32 v1, v6, 4, v1")
            a("s_lshl_b32 s66, s47, 15")
            a("s_lshl_b32 s67, s46, 6")
            a("s_add_u32 s66, s66, s67")
            a("v_add_u32 v1, s66, v1")
    for aa in range(1, 4):
        for q in range(4):
            c = ACC + 16*aa + 4*q
            a(f"ds_write_b128 v{12+aa}, v[{c}:{c+3}] offset:{1024*q}")
    a("s_waitcnt lgkmcnt(0)")
    a("s_barrier")
    for aa in range(1, 4):
        for q in range(4):
            c = ACC + 16*aa + 4*q
            a(f"ds_read_b128 v[{c}:{c+3}], v12 offset:{(aa-1)*4096 + 1024*q}")
    for aa in range(1, 4):
        a(f"s_waitcnt lgkmcnt({4*(3-aa)})")
        for q in range(8):
            a(f"v_pk_add_f32 v[{ACC+2*q}:{ACC+2*q+1}], v[{ACC+2*q}:{ACC+2*q+1}], v[{ACC+16*aa+2*q}:{ACC+16*aa+2*q+1}]")
    for q in range(8):
        a(f"v_pk_fma_f32 v[{ACC+2*q}:{ACC+2*q+1}], v[{ACC+2*q}:{ACC+2*q+1}], v[{16+2*q}:{17+2*q}], v[{40+2*q}:{41+2*q}]")
    for q in range(8): a(f"v_cvt_pk_bf16_f32 v{32+q}, v{ACC+2*q}, v{ACC+2*q+1}")
    for p in range(2):
        a(f"v_permlane32_swap_b32 v{32+4*p}, v{34+4*p}")
        a(f"v_permlane32_swap_b32 v{33+4*p}, v{35+4*p}")
        a(f"global_store_dwordx4 v1, v[{32+4*p}:{35+4*p}], s[34:35] offset:{32*p}")
    a.label("K3_end")
    a("s_endpgm")
    return a.finalize(), kd('k3_kernel', 128 + 176, 80, 128)

KERNELS = [
    ('k1_kernel', gen_k1, 432, 256, K1_LDS),
    ('k2_kernel', gen_k2, 256, 512, K2_LDS),
    ('k3_kernel', gen_k3, 256, 256, K3_LDS),
]
```

```python
import sys
from asmlib import Asm, kd

XT   = 0x000000
ST1  = 0x200000
MOD  = 0x210000
PQ   = 0x220000
KR   = 0x300000
X1T  = 0x800000
WGU  = 0xA00000
WD   = 0xD00000
HH   = 0x1000000
LOG2E = 0x3fb8aa3b
INV2PI = 0x3e22f983

def head(a, name):
    a(f".globl {name}\n.p2align 8\n.type {name},@function")
    a.label(name)

def load_args(a):
    a("s_load_dwordx16 s[8:23], s[0:1], 0")
    a("s_load_dwordx16 s[24:39], s[0:1], 64")

def ws_base(a, sd, off):
    a(f"s_add_u32 s{sd}, s38, {off:#x}")
    a(f"s_addc_u32 s{sd+1}, s39, 0")

def srd(a, sd, sbase, off, size):
    if off:
        a(f"s_add_u32 s{sd}, s{sbase}, {off:#x}")
        a(f"s_addc_u32 s{sd+1}, s{sbase+1}, 0")
    else:
        a(f"s_mov_b32 s{sd}, s{sbase}")
        a(f"s_mov_b32 s{sd+1}, s{sbase+1}")
    a(f"s_mov_b32 s{sd+2}, {size:#x}")
    a(f"s_mov_b32 s{sd+3}, 0x20000")

def code_prefetch(a, vtmp, vdst, nlines_log2=6):
    a("s_getpc_b64 s[4:5]")
    a(f"v_and_b32 v{vtmp}, 63, v0")
    a(f"v_lshlrev_b32 v{vtmp}, 7, v{vtmp}")
    a(f"global_load_dword v{vdst}, v{vtmp}, s[4:5]")

def cmul(a, d, x, w, t):
    a(f"v_pk_mul_f32 v[{t}:{t+1}], v[{x}:{x+1}], v[{w}:{w+1}] op_sel:[1,1] op_sel_hi:[1,0] neg_lo:[1,0]")
    a(f"v_pk_fma_f32 v[{d}:{d+1}], v[{x}:{x+1}], v[{w}:{w+1}], v[{t}:{t+1}] op_sel:[0,0,0] op_sel_hi:[0,1,1]")

def rb1(a, d, s):
    a(f"v_cvt_pk_bf16_f32 v{d}, v{s}, v{s}")
    a(f"v_lshlrev_b32 v{d}, 16, v{d}")

def gen_k0():
    a = Asm()
    head(a, 'k0_kernel')
    load_args(a)
    a("s_cmp_ge_u32 s2, 256")
    a("s_cbranch_scc1 K0_B")
    code_prefetch(a, 1, 127)
    a("s_lshl_b32 s40, s2, 9")
    a("v_lshl_add_u32 v1, v0, 1, s40")
    a("v_lshrrev_b32 v6, 7, v0")
    a("s_lshl_b32 s41, s2, 2")
    a("v_lshl_add_u32 v6, v6, 1, s41")
    a("s_lshl_b32 s42, s2, 13")
    a("s_add_u32 s43, s42, 4096")
    a("v_lshl_add_u32 v8, v0, 2, s43")
    a("v_lshrrev_b32 v9, 5, v0")
    a("v_lshlrev_b32 v9, 10, v9")
    a("v_and_b32 v26, 31, v0")
    a("v_lshl_add_u32 v9, v26, 4, v9")
    a("v_add_u32 v9, s42, v9")
    a("s_waitcnt lgkmcnt(0)")
    a("global_load_ushort v7, v6, s[18:19]")
    a("global_load_ushort v2, v1, s[10:11]")
    a("global_load_ushort v3, v1, s[12:13]")
    a("global_load_ushort v4, v1, s[14:15]")
    a("global_load_ushort v5, v1, s[16:17]")
    for i in range(8):
        a(f"global_load_dword v{10+i}, v8, s[8:9] offset:{i*1024-4096}")
    a("global_load_dwordx4 v[18:21], v9, s[8:9]")
    a("global_load_dwordx4 v[22:25], v9, s[8:9] offset:512")
    ws_base(a, 44, KR)
    ws_base(a, 46, ST1)
    a("s_mul_i32 s48, s2, 18432")
    a("v_lshrrev_b32 v27, 5, v0")
    a("v_mul_u32_u24 v27, 4608, v27")
    a("v_lshl_add_u32 v27, v26, 4, v27")
    a("v_add_u32 v27, s48, v27")
    a("v_add_u32 v27, 0x1000, v27")
    for i in range(4): a(f"v_mov_b32 v{60+i}, 0")
    a("v_cmp_gt_u32 vcc, 128, v0")
    a("s_and_saveexec_b64 s[50:51], vcc")
    a("s_cbranch_execz K0_A_nz")
    a("global_store_dwordx4 v27, v[60:63], s[44:45]")
    a.label("K0_A_nz")
    a("s_mov_b64 exec, -1")
    a("v_lshlrev_b32 v28, 3, v0")
    a("v_sub_u32 v28, 2047, v28")
    for i in range(9):
        a(f"v_subrev_u32 v29, {i}, v28")
        a("v_cvt_f32_u32 v39, v29")
        a("v_cvt_pk_bf16_f32 v39, v39, v39")
        a("v_and_b32 v39, 0xffff, v39")
        a("v_subrev_u32 v39, 0x4280, v39")
        a("v_cmp_gt_u32 vcc, 0x100, v29")
        a(f"v_cndmask_b32 v{30+i}, v39, v29, vcc")
        if i == 8:
            a("v_mov_b32 v39, 0x300")
            a("v_cmp_gt_i32 vcc, 0, v29")
            a("v_cndmask_b32 v38, v38, v39, vcc")
        a(f"v_lshlrev_b32 v{30+i}, 2, v{30+i}")
    a("v_lshrrev_b32 v64, 6, v0")
    a("v_mul_u32_u24 v64, 17408, v64")
    a("v_and_b32 v65, 63, v0")
    a("v_lshl_add_u32 v66, v65, 2, v64")
    a("v_and_b32 v67, 15, v0")
    a("v_bfe_u32 v68, v0, 4, 2")
    a("v_mul_u32_u24 v69, 272, v67")
    a("v_lshl_add_u32 v69, v68, 4, v69")
    a("v_add_u32 v69, v64, v69")
    a("v_and_b32 v70, 1, v68")
    a("v_lshrrev_b32 v71, 1, v68")
    a("v_lshlrev_b32 v72, 5, v67")
    a("v_lshl_add_u32 v72, v70, 4, v72")
    a("v_lshl_add_u32 v72, v71, 9, v72")
    a("v_add_u32 v72, v64, v72")
    a("v_sub_u32 v73, 4, v71")
    a("v_lshlrev_b32 v73, v73, v67")
    a("v_lshl_add_u32 v73, v68, 8, v73")
    a("v_add_u32 v73, v64, v73")
    a("v_mul_u32_u24 v74, 120, v71")
    a("v_add_u32 v74, v73, v74")
    a("v_lshlrev_b32 v75, 2, v67")
    a("v_lshl_add_u32 v75, v68, 8, v75")
    a("v_add_u32 v75, v64, v75")
    a("s_mov_b32 s52, 0x05040100")
    a("s_mov_b32 s53, 0x07060302")
    a(f"s_mov_b32 s54, {LOG2E:#x}")
    a("s_mov_b32 s55, 0x3f803f80")
    a("s_waitcnt vmcnt(10)")
    for r in (7, 2, 3, 4, 5): a(f"v_lshlrev_b32 v{r}, 16, v{r}")
    a("v_mul_f32 v7, s54, v7")
    a("v_mul_f32 v2, s54, v2")
    a("v_exp_f32 v7, v7")
    a("v_exp_f32 v2, v2")
    a("v_max_f32 v39, abs(v4), abs(v5)")
    a("v_cvt_pk_bf16_f32 v7, v7, v2")
    a("v_and_b32 v2, 0xffff0000, v7")
    a("v_lshlrev_b32 v7, 16, v7")
    for sh in (1, 2, 4, 8):
        a(f"v_max_f32_dpp v39, v39, v39 row_shr:{sh} row_mask:0xf bank_mask:0xf")
    a("v_max_f32_dpp v39, v39, v39 row_bcast:15 row_mask:0xa bank_mask:0xf")
    a("v_max_f32_dpp v39, v39, v39 row_bcast:31 row_mask:0xc bank_mask:0xf")
    a("v_mul_f32 v40, v2, v7")
    a("v_mul_f32 v41, v3, v7")
    a("v_readlane_b32 s56, v39, 63")
    a("v_mul_f32 v40, s54, v40")
    a(f"v_mul_f32 v41, {INV2PI:#x}, v41")
    a("s_lshr_b32 s56, s56, 23")
    a("s_max_u32 s56, s56, 13")
    a("s_min_u32 s56, s56, 254")
    a("s_sub_u32 s57, 267, s56")
    a("s_lshl_b32 s57, s57, 23")
    a("s_sub_u32 s56, s56, 12")
    a("s_lshl_b32 s56, s56, 23")
    def direct(d, p, conj=False):
        import struct
        pf = struct.unpack('<I', struct.pack('<f', float(p)))[0]
        npf = struct.unpack('<I', struct.pack('<f', float(-p)))[0]
        a(f"v_mul_f32 v{d}, {npf:#x}, v40")
        a(f"v_mul_f32 v{d+1}, {(npf if conj else pf):#x}, v41")
        a(f"v_exp_f32 v29, v{d}")
        a(f"v_fract_f32 v{d+1}, v{d+1}")
        a(f"v_cos_f32 v{d}, v{d+1}")
        a(f"v_sin_f32 v{d+1}, v{d+1}")
        a(f"v_mul_f32 v{d}, v{d}, v29")
        a(f"v_mul_f32 v{d+1}, v{d+1}, v29")
    W = {i: 80 + 2*i for i in range(1, 8)}
    W8 = 44; G1 = 46; YA = 48; YB = 50; GA = 52; GB = 54; T0 = 56; T1 = 58; PR = 76
    direct(W8, 8, conj=True)
    direct(G1, 128)
    direct(W[1], 1)
    a(f"v_mul_f32 v{YA}, s57, v4")
    a(f"v_mul_f32 v{YA+1}, s57, -v5")
    a("v_mul_f32 v7, s56, v7")
    cnt = [0]
    def emit(src, row):
        t = 60 + (cnt[0] & 3); cnt[0] += 1
        a(f"v_cvt_pk_f16_f32 v{t}, v{src}, v{src+1}")
        a(f"ds_write_b32 v66, v{t} offset:{row*272}")
    a("v_mov_b32 v78, 0x3c00")
    a(f"ds_write_b32 v66, v78 offset:{16*272}")
    emit(YA, 0); emit(G1, 24); emit(W[1], 17)
    chainY = []
    cur, nxt = YA, YB
    for j in range(1, 16):
        chainY.append((nxt, cur, W8, j)); cur, nxt = nxt, cur
    chainX = []
    chainX.append((PR, W[1], G1, 25))
    for i in range(2, 8):
        chainX.append((W[i], W[i-1], W[1], 16+i))
        chainX.append((PR, W[i], G1, 24+i))
    cur = G1; nxt = GA; oth = GB
    for k in range(2, 17):
        row = {2: 32, 3: 36, 4: 40, 5: 42, 6: 44, 7: 46}.get(k, 40 + k)
        chainX.append((nxt, cur, G1, row))
        if k in (2, 3):
            for q, wi in enumerate((2, 4, 6)): chainX.append((PR, nxt, W[wi], row+1+q))
        elif k < 8:
            chainX.append((PR, nxt, W[4], row+1))
        cur = nxt; nxt, oth = oth, nxt
    seq = []
    iy = 0
    for n, op in enumerate(chainX):
        seq.append(op)
        if n % 2 == 0 and iy < len(chainY): seq.append(chainY[iy]); iy += 1
    seq += chainY[iy:]
    for n, (d, x, w, row) in enumerate(seq):
        cmul(a, d, x, w, T0 if n & 1 else T1)
        emit(d, row)
    a("s_waitcnt lgkmcnt(0)")
    FR = 96
    for ks in range(2):
        for t in range(4):
            r = FR + (ks*4 + t)*4
            a(f"ds_read_b128 v[{r}:{r+3}], v69 offset:{t*16*272 + ks*64}")
    a("s_waitcnt vmcnt(0)")
    for i in range(4):
        a(f"v_perm_b32 v{40+i}, v{11+2*i}, v{10+2*i}, s52")
        a(f"v_perm_b32 v{44+i}, v{11+2*i}, v{10+2*i}, s53")
    a("v_lshl_add_u32 v8, v0, 5, s42")
    a("global_store_dwordx4 v8, v[40:43], s[38:39]")
    a("global_store_dwordx4 v8, v[44:47], s[38:39] offset:16")
    ACC = 48
    def mf(ks, base, first):
        for t in range(3):
            rx = base + (1+t)*4; ry = base
            c = "0" if first else f"v[{ACC+4*t}:{ACC+4*t+3}]"
            a(f"v_mfma_f32_16x16x32_f16 v[{ACC+4*t}:{ACC+4*t+3}], v[{rx}:{rx+3}], v[{ry}:{ry+3}], {c}")
    a("s_waitcnt lgkmcnt(4)")
    mf(0, FR, True)
    for t in range(4):
        r = FR + t*4
        a(f"ds_read_b128 v[{r}:{r+3}], v69 offset:{t*16*272 + 2*64}")
    a("s_waitcnt lgkmcnt(4)")
    mf(1, FR+16, False)
    for t in range(4):
        r = FR + 16 + t*4
        a(f"ds_read_b128 v[{r}:{r+3}], v69 offset:{t*16*272 + 3*64}")
    a("v_mov_b32 v10, 0")
    a("v_mov_b32 v11, 0")
    for i in range(8):
        a(f"v_dot2_f32_bf16 v10, v{18+i}, s55, v10")
        a(f"v_dot2_f32_bf16 v11, v{18+i}, v{18+i}, v11")
    a("s_waitcnt lgkmcnt(4)")
    mf(2, FR, False)
    a("s_waitcnt lgkmcnt(0)")
    mf(3, FR+16, False)
    for sh in (1, 2, 4, 8):
        a(f"v_add_f32_dpp v10, v10, v10 row_shr:{sh} row_mask:0xf bank_mask:0xf")
        a(f"v_add_f32_dpp v11, v11, v11 row_shr:{sh} row_mask:0xf bank_mask:0xf")
    a("v_add_f32_dpp v10, v10, v10 row_bcast:15 row_mask:0xa bank_mask:0xf")
    a("v_add_f32_dpp v11, v11, v11 row_bcast:15 row_mask:0xa bank_mask:0xf")
    for i in range(12): a(f"v_mul_f32 v{ACC+i}, v{ACC+i}, v7")
    a("v_mov_b32 v60, 0")
    a(f"ds_write_b128 v72, v[{ACC}:{ACC+3}]")
    a(f"ds_write_b64 v73, v[{ACC+4}:{ACC+5}] offset:1024")
    a(f"ds_write_b64 v74, v[{ACC+6}:{ACC+7}] offset:1032")
    for i in range(4): a(f"ds_write_b32 v75, v{ACC+8+i} offset:{2048+64*i}")
    a("ds_write_b32 v64, v60 offset:3072")
    stats_finalize(a, 10, 11, 12, 13, 14)
    a("v_lshrrev_b32 v9, 5, v0")
    a("s_lshl_b32 s40, s2, 6")
    a("v_lshl_add_u32 v9, v9, 3, s40")
    a("s_mov_b32 exec_lo, 0x80000000")
    a("s_mov_b32 exec_hi, 0x80000000")
    a("global_store_dwordx2 v9, v[12:13], s[46:47]")
    a("s_mov_b64 exec, -1")
    a("s_waitcnt lgkmcnt(0)")
    a("s_barrier")
    a("v_lshl_add_u32 v8, v0, 4, s48")
    a("v_add_u32 v9, 9216, v8")
    for ch in range(2):
        b = 80 + ch*18
        for i in range(9):
            a(f"ds_read2st64_b32 v[{b+2*i}:{b+2*i+1}], v{30+i} offset0:{ch*136} offset1:{ch*136+68}")
        if ch == 0: pass
    for ch in range(2):
        b = 80 + ch*18
        a(f"s_waitcnt lgkmcnt({9 if ch == 0 else 0})")
        for i in range(9): a(f"v_add_f32 v{b+2*i}, v{b+2*i}, v{b+2*i+1}")
        o = 40 + ch*8
        for q in range(4):
            a(f"v_cvt_pk_bf16_f32 v{o+q}, v{b+4*q+2}, v{b+4*q+4}")
            a(f"v_cvt_pk_bf16_f32 v{o+4+q}, v{b+4*q}, v{b+4*q+2}")
        va = 8 + ch
        a(f"global_store_dwordx4 v{va}, v[{o}:{o+3}], s[44:45]")
        a(f"v_add_u32 v{va}, 4608, v{va}")
        a(f"global_store_dwordx4 v{va}, v[{o+4}:{o+7}], s[44:45]")
    a("s_endpgm")
    a.label("K0_B")
    a("s_cmp_ge_u32 s2, 352")
    a("s_cbranch_scc1 K0_C")
    code_prefetch(a, 1, 127)
    a("s_sub_u32 s40, s2, 256")
    a("s_lshr_b32 s41, s40, 4")
    a("s_lshl_b32 s41, s41, 3")
    a("s_and_b32 s42, s40, 7")
    a("s_add_u32 s41, s41, s42")
    a("s_lshl_b32 s41, s41, 1")
    a("s_bfe_u32 s42, s40, 0x10003")
    a("s_add_u32 s41, s41, s42")
    a("v_lshrrev_b32 v1, 2, v0")
    a("v_and_b32 v2, 3, v0")
    a("v_mul_u32_u24 v3, 49152, v1")
    a("v_lshl_add_u32 v3, v2, 4, v3")
    a("s_lshl_b32 s42, s41, 6")
    a("v_add_u32 v3, s42, v3")
    a("v_lshlrev_b32 v4, 4, v1")
    a("s_waitcnt lgkmcnt(0)")
    srd(a, 44, 32, 0, 512*6144)
    a("global_load_dwordx4 v[8:11], v4, s[30:31]")
    for i in range(8):
        a(f"s_mov_b32 s48, {i*6144}")
        a(f"buffer_load_dwordx4 v[{16+4*i}:{19+4*i}], v3, s[44:47], s48 offen")
    a(f"s_mov_b32 s54, {(LOG2E | 0x80000000):#x}")
    a("s_waitcnt vmcnt(8)")
    for i in range(4):
        a(f"v_lshlrev_b32 v{48+2*i}, 16, v{8+i}")
        a(f"v_and_b32 v{49+2*i}, 0xffff0000, v{8+i}")
    for i in range(8): a(f"v_mul_f32 v{56+i}, s54, v{48+i}")
    for i in range(8): a(f"v_exp_f32 v{56+i}, v{56+i}")
    for i in range(8): a(f"v_add_f32 v{56+i}, 1.0, v{56+i}")
    for i in range(8): a(f"v_rcp_f32 v{56+i}, v{56+i}")
    for i in range(8): a(f"v_mul_f32 v{48+i}, v{48+i}, v{56+i}")
    for i in range(4):
        a(f"v_cvt_pk_bf16_f32 v{56+i}, v{48+2*i}, v{49+2*i}")
        a(f"v_lshlrev_b32 v{48+2*i}, 16, v{56+i}")
        a(f"v_and_b32 v{49+2*i}, 0xffff0000, v{56+i}")
    for i in range(8):
        a(f"s_waitcnt vmcnt({7-i})")
        for q in range(4):
            a(f"v_lshlrev_b32 v{72+2*q}, 16, v{16+4*i+q}")
            a(f"v_and_b32 v{73+2*q}, 0xffff0000, v{16+4*i+q}")
        for q in range(8):
            if i == 0: a(f"v_mul_f32 v{64+q}, v48, v{72+q}")
            else: a(f"v_fmac_f32 v{64+q}, v{48+i}, v{72+q}")
    for sh in (4, 8):
        for q in range(8):
            a(f"v_add_f32_dpp v{64+q}, v{64+q}, v{64+q} row_shr:{sh} row_mask:0xf bank_mask:0xf")
    a("v_lshrrev_b32 v5, 4, v0")
    a("v_lshlrev_b32 v5, 7, v5")
    a("v_lshl_add_u32 v5, v2, 5, v5")
    a("s_mov_b32 exec_lo, 0xf000f000")
    a("s_mov_b32 exec_hi, 0xf000f000")
    a("ds_write_b128 v5, v[64:67]")
    a("ds_write_b128 v5, v[68:71] offset:16")
    a("s_mov_b64 exec, -1")
    ws_base(a, 46, MOD)
    a("v_and_b32 v5, 31, v0")
    a("v_lshlrev_b32 v5, 2, v5")
    a("s_waitcnt lgkmcnt(0)")
    a("s_barrier")
    a("v_cmp_gt_u32 vcc, 32, v0")
    a("s_and_saveexec_b64 s[50:51], vcc")
    a("s_cbranch_execz K0_end")
    for i in range(8):
        a(f"ds_read2_b32 v[{16+2*i}:{17+2*i}], v5 offset0:{(2*i*32) % 256} offset1:{((2*i+1)*32) % 256}" if i < 4 else
          f"ds_read2_b32 v[{16+2*i}:{17+2*i}], v6 offset0:{(2*i*32) % 256} offset1:{((2*i+1)*32) % 256}")
        if i == 0: a("v_add_u32 v6, 1024, v5")
    a("s_lshr_b32 s42, s41, 4")
    a("s_cmp_eq_u32 s42, 1")
    a("s_cselect_b32 s43, 1.0, 0")
    a("s_cmp_eq_u32 s42, 4")
    a("s_cselect_b32 s43, 1.0, s43")
    a("s_waitcnt lgkmcnt(0)")
    for i in range(8): a(f"v_add_f32 v{16+2*i}, v{16+2*i}, v{17+2*i}")
    for i in range(4): a(f"v_add_f32 v{16+4*i}, v{16+4*i}, v{18+4*i}")
    a("v_add_f32 v16, v16, v20")
    a("v_add_f32 v24, v24, v28")
    a("v_add_f32 v16, v16, v24")
    rb1(a, 16, 16)
    a("v_add_f32 v16, s43, v16")
    rb1(a, 16, 16)
    a("s_lshl_b32 s42, s41, 7")
    a("v_add_u32 v5, s42, v5")
    a("global_store_dword v5, v16, s[46:47]")
    a("s_endpgm")
    a.label("K0_C")
    a("s_cmp_ge_u32 s2, 438")
    a("s_cbranch_scc1 K0_end")
    a("s_sub_u32 s40, s2, 352")
    a("s_lshl_b32 s41, s40, 14")
    a("s_add_u32 s41, s41, 4096")
    a("v_lshl_add_u32 v1, v0, 2, s41")
    a("v_add_u32 v2, 8192, v1")
    a("s_waitcnt lgkmcnt(0)")
    for i in range(16):
        a(f"global_load_dword v{8+i}, v{1 + i//8}, s[28:29] offset:{(i%8)*1024-4096}")
    ws_base(a, 44, WD)
    a("s_mov_b32 s52, 0x05040100")
    a("s_mov_b32 s53, 0x07060302")
    a("v_lshrrev_b32 v3, 4, v0")
    a("v_mul_u32_u24 v3, 88064, v3")
    a("v_and_b32 v4, 15, v0")
    a("v_lshl_add_u32 v3, v4, 5, v3")
    a("s_lshl_b32 s41, s40, 10")
    a("v_add_u32 v3, s41, v3")
    a("s_waitcnt vmcnt(0)")
    for h in range(2):
        rows = [4*h, 4*h+2, 8+4*h, 8+4*h+2]
        for e in range(2):
            o = 24 + (h*2+e)*4
            for q, r in enumerate(rows):
                a(f"v_perm_b32 v{o+q}, v{8+r+1}, v{8+r}, s{52+e}")
            a(f"global_store_dwordx4 v3, v[{o}:{o+3}], s[44:45] offset:{h*512+e*16}")
    a.label("K0_end")
    a("s_endpgm")
    return a.finalize(), kd('k0_kernel', 128, 64)

def stats_finalize(a, S, SS, R, RM, T):
    a(f"v_mul_f32 v{S}, 0x3b000000, v{S}")
    a(f"v_mul_f32 v{T}, v{S}, v{S}")
    a(f"v_fma_f32 v{SS}, v{SS}, s58, -v{T}" if False else f"v_mul_f32 v{SS}, 0x3b000000, v{SS}")
    a(f"v_sub_f32 v{SS}, v{SS}, v{T}")
    a(f"v_max_f32 v{SS}, 0, v{SS}")
    a(f"v_cvt_pk_bf16_f32 v{T}, v{S}, v{SS}")
    a(f"v_lshlrev_b32 v{S}, 16, v{T}")
    a(f"v_and_b32 v{SS}, 0xffff0000, v{T}")
    a(f"v_add_f32 v{SS}, 0x3727c5ac, v{SS}")
    rb1(a, SS, SS)
    a(f"v_sqrt_f32 v{SS}, v{SS}")
    rb1(a, SS, SS)
    a(f"v_rcp_f32 v{R}, v{SS}")
    a(f"v_mul_f32 v{RM}, -v{S}, v{R}")

KERNELS = [
    ('k0_kernel', gen_k0, 438, 256, 69632),
]

def main(out):
    import gen_rest
    ks = KERNELS + gen_rest.KERNELS
    hdr = open('adaLN_cond__ssm_conv_s4d__glu_gated_geglu__prompt.s.ref').read().split('; Override launch')[0]
    s = hdr
    for n, g, grid, blk, lds in ks:
        s += f"; @launch kernel={n} grid=({grid},1,1) block=({blk},1,1) lds={lds}\n"
    s += '.amdgcn_target "amdgcn-amd-amdhsa--gfx950"\n.text\n'
    kds = []
    for n, g, grid, blk, lds in ks:
        body, k = g()
        s += body + '\n'
        kds.append(k)
    s += ".p2align 8\n.fill 2304, 4, 0xbf810000\n"
    s += '.section .rodata,"a"\n'
    for k in kds: s += '.p2align 6\n' + k + '\n'
    open(out, 'w').write(s)

if __name__ == '__main__':
    main(sys.argv[1] if len(sys.argv) > 1 else 'adaLN_cond__ssm_conv_s4d__glu_gated_geglu__prompt.s')
```

```python
from asmlib import Asm, kd
from gen import *
import struct
def fbits(x): return struct.unpack('<I', struct.pack('<f', float(x)))[0]

K1_KST = 4640; K1_U = 8*K1_KST; K1_UST = 4224; K1_EX = K1_U + 2*K1_UST; K1_LDS = K1_EX + 32768
def gen_k1():
    a = Asm()
    head(a, 'k1_kernel')
    load_args(a)
    a("s_cmp_ge_u32 s2, 256")
    a("s_cbranch_scc1 K1_B")
    code_prefetch(a, 1, 70)
    a("s_and_b32 s40, s2, 7")
    a("s_lshl_b32 s40, s40, 5")
    a("s_lshr_b32 s69, s2, 3")
    a("s_add_u32 s40, s40, s69")
    a("s_lshl_b32 s42, s40, 5")
    a("v_lshl_add_u32 v1, v0, 13, s42")
    a("v_lshlrev_b32 v2, 6, v0")
    a("v_lshrrev_b32 v4, 6, v0")
    a("v_and_b32 v5, 63, v0")
    a("v_readfirstlane_b32 s41, v4")
    a("v_lshlrev_b32 v3, 4, v5")
    a("v_min_u32 v68, 11, v5")
    a("s_mul_i32 s42, s40, 384")
    a(f"s_add_u32 s42, s42, {MODP:#x}")
    a("v_lshl_add_u32 v69, v68, 5, s42")
    a("s_waitcnt lgkmcnt(0)")
    a("global_load_dwordx4 v[72:75], v69, s[38:39]")
    a("global_load_dwordx4 v[76:79], v69, s[38:39] offset:16")
    a("global_load_dwordx4 v[8:11], v1, s[38:39]")
    a("global_load_dwordx4 v[12:15], v1, s[38:39] offset:16")
    ws_base(a, 44, ST1)
    for i in range(4): a(f"global_load_dwordx4 v[{16+4*i}:{19+4*i}], v2, s[44:45] offset:{16*i}")
    a("s_lshl_b32 s42, s40, 2")
    a("s_load_dword s68, s[20:21], s42")
    srd(a, 52, 38, KR, 512*9216)
    a("s_lshr_b32 s42, s41, 1")
    a("s_lshl_b32 s43, s40, 1")
    a("s_add_u32 s43, s43, s42")
    a("s_mul_i32 s56, s43, 9216")
    a("s_and_b32 s43, s41, 1")
    a("s_lshl_b32 s48, s43, 2")
    a("s_sub_u32 s56, s56, s48")
    a("s_add_u32 s56, s56, 4")
    a("s_add_u32 s57, s56, 4608")
    a(f"s_mul_i32 s58, s41, {2*K1_KST}")
    for e in range(2):
        a(f"s_add_u32 m0, s58, {e*K1_KST}")
        for i in range(4):
            a(f"buffer_load_dwordx4 v3, s[52:55], s{56+e} offen offset:{i*1024} lds")
    a("s_add_u32 s56, s56, 4096")
    a("s_add_u32 s57, s57, 4096")
    a("s_mov_b64 exec, 0xffffff")
    for e in range(2):
        a(f"s_add_u32 m0, s58, {e*K1_KST+4096}")
        a(f"buffer_load_dwordx4 v3, s[52:55], s{56+e} offen lds")
    a("s_mov_b64 exec, -1")
    a("v_mov_b32 v71, 0")
    a("v_lshrrev_b32 v6, 5, v5")
    a(f"v_mul_u32_u24 v6, {K1_UST}, v6")
    a("v_and_b32 v7, 31, v0")
    a("v_lshl_add_u32 v6, v7, 2, v6")
    a(f"ds_write_b32 v6, v71 offset:{K1_U}")
    ACC = 208; FB = (80, 144)
    a("v_and_b32 v6, 3, v0")
    a(f"v_mul_u32_u24 v6, {K1_KST}, v6")
    a("v_bfe_u32 v7, v0, 2, 2")
    a("v_lshlrev_b32 v7, 7, v7")
    a("v_sub_u32 v6, v6, v7")
    a("v_bfe_u32 v4, v0, 4, 2")
    a("v_lshl_add_u32 v6, v4, 4, v6")
    a(f"s_mul_i32 s48, s42, {4*K1_KST}")
    a("s_lshl_b32 s49, s43, 8")
    a("s_sub_u32 s48, s48, s49")
    a("s_add_u32 s48, s48, 640")
    a("v_add_u32 v6, s48, v6")
    a("v_and_b32 v7, 15, v0")
    a("v_lshlrev_b32 v7, 3, v7")
    a("v_lshl_add_u32 v7, v4, 4, v7")
    a(f"s_mul_i32 s48, s42, {K1_UST}")
    a("s_sub_u32 s48, s48, s49")
    a(f"s_add_u32 s48, s48, {K1_U + 456 - 192}")
    a("v_add_u32 v7, s48, v7")
    a("v_lshlrev_b32 v2, 4, v0")
    a("v_lshrrev_b32 v64, 1, v68")
    a("v_cmp_eq_u32 vcc, 1, v64")
    a("v_cmp_eq_u32 s[46:47], 4, v64")
    a("s_or_b64 vcc, vcc, s[46:47]")
    a("v_cndmask_b32 v65, 0, 1.0, vcc")
    a("v_lshlrev_b32 v64, 11, v64")
    a("v_and_b32 v66, 1, v68")
    a("v_lshl_add_u32 v64, v66, 2, v64")
    a("s_lshl_b32 s48, s40, 3")
    a(f"s_add_u32 s48, s48, {MOD:#x}")
    a("v_add_u32 v64, s48, v64")
    stamp(a, 2)
    a("s_waitcnt vmcnt(16)")
    for i in range(4): a(f"v_add_f32 v{72+i}, v{72+i}, v{76+i}")
    a("v_add_f32 v72, v72, v73")
    a("v_add_f32 v74, v74, v75")
    a("v_add_f32 v72, v72, v74")
    rb1(a, 72, 72)
    a("v_add_f32 v72, v72, v65")
    rb1(a, 72, 72)
    for i, ln in enumerate((0, 1, 2, 3, 4, 5, 8, 9)): a(f"v_readlane_b32 s{60+i}, v72, {ln}")
    a("s_waitcnt lgkmcnt(0)")
    a("s_lshl_b32 s48, s68, 16")
    a("s_and_b32 s49, s68, 0xffff0000")
    a("v_mov_b32 v66, s48")
    a("v_mov_b32 v67, s49")
    a("v_mov_b32 v74, s60")
    a("v_mov_b32 v75, s61")
    a("v_mul_f32 v66, s64, v66")
    a("v_mul_f32 v67, s65, v67")
    a("s_waitcnt vmcnt(10)")
    stamp(a, 3)
    for ch in range(2):
        for q in range(4):
            a(f"v_lshlrev_b32 v{32+8*ch+2*q}, 16, v{8+4*ch+q}")
            a(f"v_and_b32 v{33+8*ch+2*q}, 0xffff0000, v{8+4*ch+q}")
        for l in range(8): a(f"v_fma_f32 v{48+8*ch+l}, v{32+8*ch+l}, v{16+2*l}, v{17+2*l}")
        for l in range(8): a(f"v_fma_f32 v{48+8*ch+l}, v{48+8*ch+l}, s{62+ch}, v{74+ch}")
        for q in range(4): a(f"v_cvt_pk_bf16_f32 v{8+4*ch+q}, v{48+8*ch+2*q}, v{49+8*ch+2*q}")
        a(f"ds_write_b128 v2, v[{8+4*ch}:{11+4*ch}] offset:{K1_U + ch*K1_UST + 128}")
    stamp(a, 4)
    a("s_waitcnt vmcnt(0) lgkmcnt(0)")
    stamp(a, 5)
    a("s_barrier")
    stamp(a, 6)
    def reads(rr):
        B = FB[rr & 1]; ro = 64*(3-rr); L = []
        for n in range(8):
            i = n; j = 7 - n
            L.append(f"ds_read_b128 v[{B+4*i}:{B+4*i+3}], v6 offset:{512*(7-i)+ro}")
            L.append(f"ds_read_b64 v[{B+32+4*j}:{B+32+4*j+1}], v7 offset:{512*j+ro}")
            L.append(f"ds_read_b64 v[{B+32+4*j+2}:{B+32+4*j+3}], v7 offset:{512*j+ro+8}")
        return L
    for t in reads(0): a(t)
    a("global_store_dword v64, v72, s[38:39]")
    srd(a, 52, 38, WGU, 86*32768)
    a("s_mul_i32 s48, s69, 98304")
    a("v_lshlrev_b32 v4, 7, v0")
    for i in range(3):
        a(f"buffer_load_dword v{76+i}, v4, s[52:55], s48 offen")
        a("s_add_u32 s48, s48, 32768")
    for ch in range(2):
        for l in range(8): a(f"v_fmac_f32 v{32+8*ch+l}, v{48+8*ch+l}, v{66+ch}")
    a(".p2align 3")
    for rr in range(4):
        B = FB[rr & 1]
        nxt = reads(rr+1) if rr < 3 else []
        n = 0
        for j in range(7, -1, -1):
            if rr == 0:
                issued_next = min(len(nxt), n)
                w = 24 - 3*(8-j) + issued_next
                if w <= 15: a(f"s_waitcnt lgkmcnt({w})"); a("s_nop 0")
                else: a("s_waitcnt lgkmcnt(15)"); a("s_nop 0")
            elif j == 7:
                a("s_waitcnt lgkmcnt(0)"); a("s_nop 0")
            for i in range(8-j):
                c = ACC + 4*(i+j)
                first = rr == 0 and (i == 0)
                cc = "0" if first else f"v[{c}:{c+3}]"
                a(f"v_mfma_f32_16x16x32_bf16 v[{c}:{c+3}], v[{B+4*i}:{B+4*i+3}], v[{B+32+4*j}:{B+32+4*j+3}], {cc}")
                if (rr > 0 or j <= 3) and n < len(nxt): a(nxt[n]); n += 1
        while n < len(nxt): a(nxt[n]); n += 1
    stamp(a, 7)
    a("s_lshl_b32 s48, s41, 13")
    a("v_add_u32 v3, s48, v3")
    a("v_lshlrev_b32 v2, 5, v0")
    ws_base(a, 44, X1T)
    ws_base(a, 46, ET)
    a("v_lshrrev_b32 v1, 2, v0")
    a("v_lshlrev_b32 v1, 15, v1")
    a("v_and_b32 v4, 3, v0")
    a("v_lshl_add_u32 v1, v4, 4, v1")
    a("s_lshl_b32 s42, s40, 7")
    a("v_add_u32 v1, s42, v1")
    a(f"v_add_u32 v2, {K1_EX}, v2")
    for t in range(8):
        a(f"ds_write_b128 v3, v[{ACC+4*t}:{ACC+4*t+3}] offset:{K1_EX + 1024*t}")
    a("s_waitcnt lgkmcnt(0)")
    a("s_barrier")
    stamp(a, 8)
    for w in range(4):
        for q in range(2):
            r = 80 + 8*w + 4*q
            a(f"ds_read_b128 v[{r}:{r+3}], v2 offset:{8192*w + 16*q}")
    for ch in range(2):
        a(f"s_waitcnt lgkmcnt({4 if ch == 0 else 0})")
        for l in range(8): a(f"v_add_f32 v{80+16*ch+l}, v{80+16*ch+l}, v{88+16*ch+l}")
        for l in range(8): a(f"v_fmac_f32 v{32+8*ch+l}, s{64+ch}, v{80+16*ch+l}")
        for l in range(8): a(f"v_mul_f32 v{48+8*ch+l}, s{66+ch}, v{32+8*ch+l}")
        for q in range(4): a(f"v_cvt_pk_bf16_f32 v{16+4*ch+q}, v{48+8*ch+2*q}, v{49+8*ch+2*q}")
        a(f"global_store_dwordx4 v1, v[{16+4*ch}:{19+4*ch}], s[46:47] offset:{64*ch}")
        for q in range(4): a(f"v_cvt_pk_bf16_f32 v{8+4*ch+q}, v{32+8*ch+2*q}, v{33+8*ch+2*q}")
        a(f"global_store_dwordx4 v1, v[{8+4*ch}:{11+4*ch}], s[44:45] offset:{64*ch}")
    stamp(a, 9)
    endpgm(a, 1)
    a.label("K1_B")
    a("s_cmp_ge_u32 s2, 342")
    a("s_cbranch_scc1 K1_C")
    code_prefetch(a, 1, 70)
    a("s_sub_u32 s40, s2, 256")
    a("v_mul_u32_u24 v1, 384, v0")
    a(f"v_add_u32 v1, {MODP + 192:#x}, v1")
    a("v_lshrrev_b32 v4, 6, v0")
    a("v_and_b32 v5, 63, v0")
    a("v_lshlrev_b32 v2, 13, v4")
    a("v_lshl_add_u32 v2, v5, 4, v2")
    a("s_lshl_b32 s41, s40, 15")
    a(f"s_add_u32 s41, s41, {WGU + 4096:#x}")
    a("v_add_u32 v2, s41, v2")
    a("s_waitcnt lgkmcnt(0)")
    for i in range(8): a(f"global_load_dwordx4 v[{8+4*i}:{11+4*i}], v1, s[38:39] offset:{16*i}")
    for i in range(8): a(f"global_load_dwordx4 v[{80+4*i}:{83+4*i}], v2, s[38:39] offset:{1024*i-4096}")
    a("v_lshlrev_b32 v3, 2, v0")
    a("v_lshrrev_b32 v6, 5, v5")
    a("v_lshlrev_b32 v6, 4, v6")
    a("v_lshl_add_u32 v6, v4, 8, v6")
    a("s_waitcnt vmcnt(8)")
    for g in range(4):
        b = 8 + 8*g
        for i in range(4): a(f"v_add_f32 v{b+i}, v{b+i}, v{b+4+i}")
        a(f"v_add_f32 v{b}, v{b}, v{b+1}")
        a(f"v_add_f32 v{b+2}, v{b+2}, v{b+3}")
        a(f"v_add_f32 v{b}, v{b}, v{b+2}")
    a("v_cvt_pk_bf16_f32 v40, v8, v16")
    a("v_cvt_pk_bf16_f32 v41, v24, v32")
    a("v_lshlrev_b32 v42, 16, v41")
    a("v_and_b32 v43, 0xffff0000, v41")
    a("v_add_f32 v42, 1.0, v42")
    a("v_add_f32 v43, 1.0, v43")
    a("v_cvt_pk_bf16_f32 v41, v42, v43")
    a("ds_write2st64_b32 v3, v41, v40 offset0:0 offset1:4")
    a("v_mov_b32 v60, 0")
    a("v_mov_b32 v61, 0")
    a("s_waitcnt lgkmcnt(0)")
    a("s_barrier")
    for i in range(8):
        a(f"ds_read_b128 v[{112+8*i}:{115+8*i}], v6 offset:{32*i}")
        a(f"ds_read_b128 v[{116+8*i}:{119+8*i}], v6 offset:{1024+32*i}")
    a("s_waitcnt vmcnt(0) lgkmcnt(0)")
    for i in range(8):
        for q in range(4):
            a(f"v_dot2_f32_bf16 v60, v{80+4*i+q}, v{112+8*i+q}, v60")
            a(f"v_dot2_f32_bf16 v61, v{80+4*i+q}, v{116+8*i+q}, v61")
    a("v_permlane32_swap_b32 v60, v61")
    a("v_add_f32 v60, v60, v61")
    a("ds_write_b32 v3, v60 offset:2048")
    a("s_lshl_b32 s41, s40, 8")
    a(f"s_add_u32 s41, s41, {PQ:#x}")
    a("v_add_u32 v7, s41, v3")
    a("s_waitcnt lgkmcnt(0)")
    a("s_barrier")
    a("v_cmp_gt_u32 vcc, 64, v0")
    a("s_and_saveexec_b64 s[50:51], vcc")
    a("s_cbranch_execz K1_end")
    a("ds_read2st64_b32 v[16:17], v3 offset0:8 offset1:9")
    a("ds_read2st64_b32 v[18:19], v3 offset0:10 offset1:11")
    a("s_waitcnt lgkmcnt(0)")
    a("v_add_f32 v16, v16, v17")
    a("v_add_f32 v18, v18, v19")
    a("v_add_f32 v16, v16, v18")
    a("global_store_dword v7, v16, s[38:39]")
    endpgm(a, 1)
    a.label("K1_C")
    a("s_cmp_ge_u32 s2, 428")
    a("s_cbranch_scc1 K1_end")
    a("s_sub_u32 s40, s2, 342")
    a("s_lshl_b32 s41, s40, 14")
    a("s_add_u32 s41, s41, 4096")
    a("v_lshl_add_u32 v1, v0, 2, s41")
    a("v_add_u32 v2, 8192, v1")
    a("s_waitcnt lgkmcnt(0)")
    for i in range(16):
        a(f"global_load_dword v{8+i}, v{1 + i//8}, s[28:29] offset:{(i%8)*1024-4096}")
    ws_base(a, 44, WD)
    a("s_mov_b32 s52, 0x05040100")
    a("s_mov_b32 s53, 0x07060302")
    a("v_lshrrev_b32 v3, 4, v0")
    a("v_mul_u32_u24 v3, 88064, v3")
    a("v_and_b32 v4, 15, v0")
    a("v_lshl_add_u32 v3, v4, 5, v3")
    a("s_lshl_b32 s41, s40, 10")
    a("v_add_u32 v3, s41, v3")
    a("s_waitcnt vmcnt(0)")
    for h in range(2):
        rows = [4*h, 4*h+2, 8+4*h, 8+4*h+2]
        for e in range(2):
            o = 24 + (h*2+e)*4
            for q, r in enumerate(rows):
                a(f"v_perm_b32 v{o+q}, v{8+r+1}, v{8+r}, s{52+e}")
            a(f"global_store_dwordx4 v3, v[{o}:{o+3}], s[44:45] offset:{h*512+e*16}")
    endpgm(a, 1)
    a.label("K1_end")
    a("s_endpgm")
    return a.finalize(), kd('k1_kernel', 240, 102 if STAMP else 72)

K2_SLOT = 20480; K2_NS = 6; K2_D = 3
K2_PQ = 131072; K2_STF = K2_PQ + 2048; K2_STP = K2_STF + 1024; K2_LDS = K2_STP + 2048
def gen_k2():
    a = Asm()
    head(a, 'k2_kernel')
    a("s_load_dwordx4 s[36:39], s[0:1], 112")
    a("s_and_b32 s40, s2, 7")
    a("s_lshr_b32 s69, s2, 3")
    a("s_cmp_ge_u32 s69, 32")
    a("s_cbranch_scc1 K2_end")
    code_prefetch(a, 1, 255)
    a("v_lshrrev_b32 v4, 6, v0")
    a("v_and_b32 v5, 63, v0")
    a("v_readfirstlane_b32 s43, v4")
    a("v_lshlrev_b32 v3, 4, v5")
    a("v_bfe_u32 v6, v0, 5, 1")
    a("v_lshlrev_b32 v6, 9, v6")
    a("v_bfe_u32 v7, v0, 2, 2")
    a("v_lshl_add_u32 v6, v7, 6, v6")
    a("v_bfe_u32 v7, v0, 4, 1")
    a("v_lshl_add_u32 v6, v7, 5, v6")
    a("v_and_b32 v7, 3, v0")
    a("v_lshl_add_u32 v6, v7, 3, v6")
    a("s_lshl_b32 s40, s40, 1")
    a("s_cmp_lt_u32 s69, 2")
    a("s_cbranch_scc1 K2_stat")
    a("s_sub_u32 s41, s69, 2")
    a("s_cmp_ge_u32 s41, 15")
    a("s_cselect_b32 s42, 15, 0")
    a("s_addc_u32 s40, s40, 0")
    a("s_sub_u32 s41, s41, s42")
    a("s_and_b32 s44, s43, 3")
    a("s_mul_i32 s45, s41, 6")
    a("s_lshl_b32 s46, s40, 2")
    a("s_cmp_ge_u32 s43, 4")
    a("s_cbranch_scc0 K2_comp")
    a("s_mul_i32 s47, s44, 3")
    for b in range(3):
        a(f"s_add_u32 s48, s47, {b}")
        a("s_lshr_b32 s49, s48, 1")
        a("s_add_u32 s49, s49, s45")
        a("s_lshl_b32 s49, s49, 15")
        a("s_and_b32 s48, s48, 1")
        a("s_lshl_b32 s48, s48, 10")
        a("s_add_u32 s49, s49, s48")
        a(f"s_sub_u32 s49, s49, {b*1024}")
        a(f"v_add_u32 v{8+b}, s49, v3")
    a("s_add_u32 s49, s46, s44")
    a("s_lshl_b32 s49, s49, 15")
    a("v_add_u32 v11, s49, v3")
    a("s_lshl_b32 s60, s47, 10")
    a("s_add_u32 s60, s60, 8192")
    a("s_lshl_b32 s61, s44, 11")
    a("s_lshl_b32 s62, s41, 11")
    a("s_mov_b32 s63, 0")
    a("s_mov_b32 s65, 0")
    a("s_waitcnt lgkmcnt(0)")
    srd(a, 48, 38, ET, 0x200000)
    srd(a, 52, 38, WGU, 86*32768)
    srd(a, 56, 38, PQ, 86*256)
    a("s_mul_i32 s64, s44, 384")
    a(f"s_add_u32 m0, s64, {K2_PQ}")
    a("s_lshl_b32 s66, s45, 8")
    a("s_add_u32 s64, s64, s66")
    a("s_mov_b64 exec, 0xffffff")
    a("buffer_load_dwordx4 v3, s[56:59], s64 offen lds")
    a("s_mov_b64 exec, -1")
    def issue():
        a("s_add_u32 m0, s63, s61")
        a("s_and_b32 s62, s62, 0x7fff")
        a("buffer_load_dwordx4 v11, s[48:51], s62 offen lds")
        a("buffer_load_dwordx4 v11, s[48:51], s62 offen offset:1024 lds")
        a("s_add_u32 m0, s63, s60")
        a(f"s_add_u32 s63, s63, {K2_SLOT}")
        for b in range(3):
            a(f"buffer_load_dwordx4 v{8+b}, s[52:55], s62 offen offset:{b*1024} lds")
        a("s_add_u32 s62, s62, 2048")
        a(f"s_cmp_ge_u32 s63, {K2_SLOT*K2_NS}")
        a("s_cselect_b32 s63, 0, s63")
    a.label("K2_lloop")
    issue()
    a("s_add_u32 s65, s65, 1")
    a(f"s_cmp_le_u32 s65, {K2_D}")
    a("s_cbranch_scc1 K2_lloop")
    a(f"s_waitcnt vmcnt({5*K2_D})")
    a("s_barrier")
    a("s_cmp_lt_u32 s65, 16")
    a("s_cbranch_scc1 K2_lloop")
    stamp(a, 2)
    srd(a, 56, 38, WD, 16*86*1024)
    a("s_mul_i32 s47, s69, 44032")
    a("v_and_b32 v12, 0xff, v0")
    a("v_lshlrev_b32 v12, 7, v12")
    a("buffer_load_dword v20, v12, s[56:59], s47 offen")
    a("s_add_u32 s47, s47, 11264")
    a("buffer_load_dword v21, v12, s[56:59], s47 offen")
    for d in range(K2_D - 1, -1, -1):
        a(f"s_waitcnt vmcnt({5*d+2})")
        a("s_barrier")
    stamp(a, 3)
    a("s_barrier")
    endpgm(a, 2)
    a.label("K2_stat")
    a("s_add_u32 s40, s40, s69")
    a("s_lshl_b32 s46, s40, 17")
    a("s_lshl_b32 s47, s43, 14")
    a("s_add_u32 s46, s46, s47")
    a("s_mov_b32 s66, 0x3f803f80")
    a("v_add_u32 v13, s47, v6")
    a("v_mov_b32 v40, 0")
    a("v_mov_b32 v41, 0")
    a("s_waitcnt lgkmcnt(0)")
    srd(a, 48, 38, X1T, 0x200000)
    for g in range(4):
        a(f"s_add_u32 m0, s47, {4096*g}")
        for i in range(4): a(f"buffer_load_dwordx4 v3, s[48:51], s46 offen offset:{1024*i} lds")
        a("s_add_u32 s46, s46, 4096")
    for g in range(4):
        a(f"s_waitcnt vmcnt({12-4*g})")
        for i in range(4):
            a(f"ds_read_b64_tr_b16 v[{16+4*i}:{17+4*i}], v13 offset:{4096*g+1024*i}")
            a(f"ds_read_b64_tr_b16 v[{18+4*i}:{19+4*i}], v13 offset:{4096*g+1024*i+256}")
        a("s_waitcnt lgkmcnt(0)")
        for q in range(16):
            a(f"v_dot2_f32_bf16 v40, v{16+q}, s66, v40")
            a(f"v_dot2_f32_bf16 v41, v{16+q}, v{16+q}, v41")
    a("v_permlane32_swap_b32 v40, v41")
    a("v_lshlrev_b32 v14, 2, v0")
    a(f"v_add_u32 v14, {K2_STP}, v14")
    a("v_add_f32 v40, v40, v41")
    a("ds_write_b32 v14, v40")
    a("v_bfe_u32 v17, v0, 5, 2")
    a("v_lshlrev_b32 v17, 9, v17")
    a("v_and_b32 v18, 31, v0")
    a("v_lshl_add_u32 v17, v18, 2, v17")
    a(f"v_add_u32 v17, {K2_STP}, v17")
    a("s_lshl_b32 s66, s40, 10")
    a(f"s_add_u32 s66, s66, {ST2:#x}")
    a("v_lshl_add_u32 v16, v0, 3, s66")
    a("s_waitcnt lgkmcnt(0)")
    a("s_barrier")
    a("s_cmp_ge_u32 s43, 2")
    a("s_cbranch_scc1 K2_end")
    a("ds_read2_b32 v[20:21], v17 offset0:0 offset1:64")
    a("ds_read2_b32 v[22:23], v17 offset0:32 offset1:96")
    a("s_waitcnt lgkmcnt(0)")
    a("v_add_f32 v20, v20, v21")
    a("v_add_f32 v21, v22, v23")
    stats_finalize(a, 20, 21, 22, 23, 24)
    a("global_store_dwordx2 v16, v[22:23], s[38:39] sc1")
    a("s_lshl_b32 s66, s40, 2")
    a("v_mov_b32 v13, s66")
    a("v_mov_b32 v14, 1")
    a("s_waitcnt vmcnt(0)")
    a("s_barrier")
    a("s_cmp_ge_u32 s43, 1")
    a("s_cbranch_scc1 K2_end")
    a("s_mov_b64 exec, 1")
    a("global_store_dword v13, v14, s[36:37] sc1")
    endpgm(a, 2)
    a.label("K2_comp")
    ACC = 64; S0 = 8; S1 = 28; PQR = 160; STR = 224
    for i in range(96): a(f"v_mov_b32 v{ACC+i}, 0")
    a("s_and_b32 s47, s44, 1")
    a("s_lshr_b32 s48, s44, 1")
    a("s_lshl_b32 s49, s47, 12")
    a("v_add_u32 v6, s49, v6")
    a("s_mul_i32 s49, s48, 6144")
    a("s_add_u32 s49, s49, 8192")
    a("v_add_u32 v7, s49, v3")
    a("v_mov_b32 v1, v6")
    a("v_mov_b32 v2, v7")
    a("s_mov_b32 s65, 0")
    a("s_mov_b32 s67, 0")
    a("s_mov_b32 s68, 11")
    a("s_lshl_b32 s66, s40, 2")
    a("v_mov_b32 v48, s66")
    a("v_and_b32 v49, 31, v0")
    a("s_lshl_b32 s66, s40, 10")
    a("s_lshl_b32 s49, s47, 9")
    a("s_add_u32 s66, s66, s49")
    a(f"s_add_u32 s66, s66, {ST2:#x}")
    a("v_lshl_add_u32 v49, v49, 3, s66")
    def rd(S, ksub):
        L = []
        L.append(f"ds_read_b128 v[{S}:{S+3}], v2 offset:{ksub*1024}")
        for nt in range(2):
            r = S + 12 + 4*nt
            L.append(f"ds_read_b64_tr_b16 v[{r}:{r+1}], v1 offset:{nt*2048+ksub*1024}")
            L.append(f"ds_read_b64_tr_b16 v[{r+2}:{r+3}], v1 offset:{nt*2048+ksub*1024+256}")
        for f in (1, 2): L.append(f"ds_read_b128 v[{S+4*f}:{S+4*f+3}], v2 offset:{f*2048+ksub*1024}")
        return L
    def mf(S, u):
        f = u >> 1; nt = u & 1
        c = ACC + 16*u; r = S + 12 + 4*nt
        a(f"v_mfma_f32_32x32x16_bf16 v[{c}:{c+15}], v[{S+4*f}:{S+4*f+3}], v[{r}:{r+3}], v[{c}:{c+15}]")
    a("s_waitcnt lgkmcnt(0)")
    stamp(a, 2)
    a("s_barrier")
    stamp(a, 3)
    for t in rd(S0, 0): a(t)
    a("s_waitcnt lgkmcnt(0)")
    a(".p2align 3")
    a.label("K2_cloop")
    L = rd(S1, 1)
    for u in range(6):
        mf(S0, u)
        for t in L[2*u:2*u+2]: a(t)
        if u == 4:
            a(f"s_add_u32 s67, s67, {K2_SLOT}")
            a(f"s_cmp_ge_u32 s67, {K2_SLOT*K2_NS}")
            a("s_cselect_b32 s67, 0, s67")
            a("s_add_u32 s65, s65, 1")
            a("v_add_u32 v1, s67, v6")
            a("v_add_u32 v2, s67, v7")
    a("s_waitcnt lgkmcnt(0)")
    a("s_barrier")
    L = rd(S0, 0)
    for u in range(6):
        mf(S1, u)
        for t in L[2*u:2*u+2]: a(t)
    a("s_cmp_lt_u32 s65, s68")
    a("s_waitcnt lgkmcnt(0)")
    a("s_cbranch_scc1 K2_cloop")
    a("s_cmp_lg_u32 s65, 11")
    a("s_cbranch_scc1 K2_h2")
    a("global_load_dword v50, v48, s[36:37] sc1")
    a("s_mov_b32 s68, 13")
    a("s_branch K2_cloop")
    a.label("K2_h2")
    a("s_cmp_lg_u32 s65, 13")
    a("s_cbranch_scc1 K2_h3")
    a("s_mov_b32 s68, 16")
    a("s_waitcnt vmcnt(0)")
    for nt in range(2): a(f"global_load_dwordx2 v[{STR+2*nt}:{STR+2*nt+1}], v49, s[38:39] offset:{256*nt} sc1")
    a("s_branch K2_cloop")
    a.label("K2_h3")
    stamp(a, 4)
    a("v_cmp_ne_u32 vcc, 0, v50")
    a("s_cbranch_vccnz K2_h4")
    a.label("K2_poll")
    a("global_load_dword v50, v48, s[36:37] sc1")
    a("s_waitcnt vmcnt(0)")
    a("v_cmp_eq_u32 vcc, 0, v50")
    a("s_cbranch_vccnz K2_poll")
    for nt in range(2): a(f"global_load_dwordx2 v[{STR+2*nt}:{STR+2*nt+1}], v49, s[38:39] offset:{256*nt} sc1")
    a.label("K2_h4")
    a("v_bfe_u32 v1, v0, 5, 1")
    a("v_lshlrev_b32 v1, 4, v1")
    a("s_mul_i32 s49, s48, 768")
    a(f"s_add_u32 s49, s49, {K2_PQ}")
    a("v_add_u32 v1, s49, v1")
    def rdpq(f):
        b = PQR + 32*(f & 1)
        for pq in range(2):
            for q in range(4):
                r = b + 16*pq + 4*q
                a(f"ds_read_b128 v[{r}:{r+3}], v1 offset:{f*256+pq*128+q*32}")
    rdpq(0)
    a("s_mul_i32 s49, s48, 3")
    a("s_add_u32 s45, s45, s49")
    a("s_lshl_b32 s49, s47, 1")
    a("s_add_u32 s46, s46, s49")
    srd(a, 48, 38, HH, 64*86*1024)
    a("s_mul_i32 s46, s46, 86")
    a("s_add_u32 s46, s46, s45")
    a("s_lshl_b32 s46, s46, 10")
    a(f"s_add_u32 s47, s46, {86*1024}")
    K1c = -2.0*1.4426950408889634*0.7978845608028654
    a(f"v_mov_b32 v8, {fbits(K1c*0.044715):#x}")
    a(f"v_mov_b32 v9, {fbits(K1c):#x}")
    a("v_mov_b32 v10, 1.0")
    a("v_mov_b32 v11, 1.0")
    a("s_waitcnt vmcnt(0)")
    stamp(a, 5)
    for f in range(3):
        a(f"s_cmp_ge_u32 s45, {86-f}")
        a("s_cbranch_scc1 K2_fin")
        a("s_waitcnt lgkmcnt(0)")
        if f < 2: rdpq(f+1)
        P = PQR + 32*(f & 1)
        for nt in range(2):
            c = ACC + 16*(2*f+nt); s = STR + 2*nt; T = 12 + 16*nt
            for q in range(8):
                a(f"v_pk_fma_f32 v[{T+2*q}:{T+2*q+1}], v[{P+2*q}:{P+2*q+1}], v[{s}:{s+1}], v[{P+16+2*q}:{P+17+2*q}] op_sel:[0,1,0] op_sel_hi:[1,1,1]")
            for q in range(8):
                a(f"v_pk_fma_f32 v[{c+2*q}:{c+2*q+1}], v[{c+2*q}:{c+2*q+1}], v[{s}:{s+1}], v[{T+2*q}:{T+2*q+1}] op_sel:[0,0,0] op_sel_hi:[1,0,1]")
            for q in range(4): a(f"v_pk_mul_f32 v[{T+2*q}:{T+2*q+1}], v[{c+2*q}:{c+2*q+1}], v[{c+2*q}:{c+2*q+1}]")
            for q in range(4): a(f"v_pk_fma_f32 v[{T+2*q}:{T+2*q+1}], v[{T+2*q}:{T+2*q+1}], v[8:9], v[8:9] op_sel:[0,0,1] op_sel_hi:[1,0,1]")
            for q in range(4): a(f"v_pk_mul_f32 v[{T+2*q}:{T+2*q+1}], v[{T+2*q}:{T+2*q+1}], v[{c+2*q}:{c+2*q+1}]")
            for q in range(8): a(f"v_exp_f32 v{T+q}, v{T+q}")
            for q in range(4): a(f"v_pk_mul_f32 v[{c+2*q}:{c+2*q+1}], v[{c+2*q}:{c+2*q+1}], v[{c+8+2*q}:{c+9+2*q}]")
            for q in range(4): a(f"v_pk_add_f32 v[{T+2*q}:{T+2*q+1}], v[{T+2*q}:{T+2*q+1}], v[10:11]")
            for q in range(8): a(f"v_rcp_f32 v{T+q}, v{T+q}")
            for q in range(4): a(f"v_pk_mul_f32 v[{c+2*q}:{c+2*q+1}], v[{c+2*q}:{c+2*q+1}], v[{T+2*q}:{T+2*q+1}]")
            for q in range(4): a(f"v_cvt_pk_bf16_f32 v{c+8+q}, v{c+2*q}, v{c+2*q+1}")
            a(f"buffer_store_dwordx4 v[{c+8}:{c+11}], v3, s[48:51], s{46+nt} offen offset:{1024*f}")
    a.label("K2_fin")
    stamp(a, 6)
    endpgm(a, 2)
    a.label("K2_end")
    a("s_endpgm")
    return a.finalize(), kd('k2_kernel', 256, 102 if STAMP else 80)

K3_X = 49152; K3_LDS = K3_X + 8192
def gen_k3():
    a = Asm()
    head(a, 'k3_kernel')
    a("s_load_dwordx2 s[38:39], s[0:1], 120")
    a("s_load_dwordx2 s[34:35], s[0:1], 104")
    a("s_cmp_ge_u32 s2, 256")
    a("s_cbranch_scc1 K3_end")
    code_prefetch(a, 1, 127)
    a("s_and_b32 s40, s2, 7")
    a("s_lshl_b32 s40, s40, 2")
    a("s_lshr_b32 s41, s2, 6")
    a("s_add_u32 s40, s40, s41")
    a("s_bfe_u32 s41, s2, 0x30003")
    a("v_lshrrev_b32 v4, 6, v0")
    a("v_and_b32 v5, 63, v0")
    a("v_readfirstlane_b32 s43, v4")
    a("v_lshlrev_b32 v3, 4, v5")
    a("s_and_b32 s44, s43, 1")
    a("s_lshr_b32 s45, s43, 1")
    a("s_lshl_b32 s46, s41, 1")
    a("s_add_u32 s46, s46, s44")
    a("s_lshl_b32 s47, s40, 1")
    a("s_add_u32 s47, s47, s45")
    a("s_xor_b32 s60, s46, 1")
    a("s_xor_b32 s61, s47, 1")
    for r, s in ((8, 46), (9, 60), (10, 47), (11, 61)):
        a(f"s_mul_i32 s62, s{s}, {86*1024}")
        a(f"v_add_u32 v{r}, s62, v3")
    a("s_lshl_b32 s62, s43, 10")
    a("s_waitcnt lgkmcnt(0)")
    srd(a, 48, 38, WD, 16*86*1024)
    srd(a, 52, 38, HH, 64*86*1024)
    NR = 11
    def ld(i):
        r = 16*(i % NR)
        if i == 21:
            a("s_cmp_lt_u32 s43, 2")
            a("s_cselect_b32 s62, s62, 0x10000000")
        a(f"buffer_load_dwordx4 a[{r}:{r+3}], v8, s[48:51], s62 offen")
        a(f"buffer_load_dwordx4 a[{r+8}:{r+11}], v10, s[52:55], s62 offen")
        a(f"buffer_load_dwordx4 a[{r+4}:{r+7}], v9, s[48:51], s62 offen")
        a(f"buffer_load_dwordx4 a[{r+12}:{r+15}], v11, s[52:55], s62 offen")
        a("s_add_u32 s62, s62, 4096")
    srd(a, 56, 38, X1T, 0x200000)
    a("s_lshl_b32 s63, s47, 15")
    a("s_lshl_b32 s64, s46, 11")
    a("s_add_u32 s63, s63, s64")
    a("s_lshl_b32 s64, s43, 11")
    a(f"s_add_u32 m0, s64, {K3_X}")
    a("s_lshl_b32 s65, s46, 7")
    a(f"s_add_u32 s65, s65, {MOD + 5*2048:#x}")
    a("buffer_load_dwordx4 v3, s[56:59], s63 offen lds")
    a("buffer_load_dwordx4 v3, s[56:59], s63 offen offset:1024 lds")
    a("v_bfe_u32 v6, v0, 5, 1")
    a("v_lshl_add_u32 v7, v6, 4, s65")
    for q in range(4): a(f"global_load_dwordx4 v[{16+4*q}:{19+4*q}], v7, s[38:39] offset:{32*q}")
    for i in range(NR): ld(i)
    stamp(a, 2)
    ACC = 64
    def mf(i):
        r = 16*(i % NR)
        for aa in range(4):
            A = r + 4*(aa & 1); B = r + 8 + 4*(aa >> 1); c = ACC + 16*aa
            cc = "0" if i == 0 else f"v[{c}:{c+15}]"
            a(f"v_mfma_f32_32x32x16_bf16 v[{c}:{c+15}], a[{A}:{A+3}], a[{B}:{B+3}], {cc}")
    a("v_lshlrev_b32 v12, 8, v6")
    a("v_bfe_u32 v13, v0, 2, 2")
    a("v_lshl_add_u32 v12, v13, 6, v12")
    a("v_bfe_u32 v13, v0, 4, 1")
    a("v_lshl_add_u32 v12, v13, 5, v12")
    a("v_and_b32 v13, 3, v0")
    a("v_lshl_add_u32 v12, v13, 3, v12")
    a("v_add_u32 v12, s64, v12")
    for i in range(22):
        later = min(21, i + NR - 1) - i
        a(f"s_waitcnt vmcnt({4*later})")
        if i == 0: stamp(a, 3)
        if i == 11: stamp(a, 4)
        if i == 21: stamp(a, 5)
        if i == 0:
            for q in range(4): a(f"ds_read_b64_tr_b16 v[{32+2*q}:{33+2*q}], v12 offset:{K3_X + 512*q}")
        mf(i)
        if i + NR < 22: ld(i + NR)
        if i == 1:
            a("s_waitcnt lgkmcnt(0)")
            for q in range(8):
                a(f"v_lshlrev_b32 v{40+2*q}, 16, v{32+q}")
                a(f"v_and_b32 v{41+2*q}, 0xffff0000, v{32+q}")
        if i == 2:
            for aa in range(1, 4):
                a(f"s_xor_b32 s66, s43, {aa}")
                a("s_mul_i32 s66, s66, 12288")
                a(f"s_add_u32 s66, s66, {(aa-1)*4096}")
                a(f"v_add_u32 v{12+aa}, s66, v3")
            a("s_mul_i32 s66, s43, 12288")
            a("v_add_u32 v12, s66, v3")
            a("v_and_b32 v1, 31, v0")
            a("v_lshlrev_b32 v1, 10, v1")
            a("v_lshl_add_u32 v1, v6, 4, v1")
            a("s_lshl_b32 s66, s47, 15")
            a("s_lshl_b32 s67, s46, 6")
            a("s_add_u32 s66, s66, s67")
            a("v_add_u32 v1, s66, v1")
    for aa in range(1, 4):
        for q in range(4):
            c = ACC + 16*aa + 4*q
            a(f"ds_write_b128 v{12+aa}, v[{c}:{c+3}] offset:{1024*q}")
    a("s_waitcnt lgkmcnt(0)")
    stamp(a, 6)
    a("s_barrier")
    stamp(a, 7)
    for aa in range(1, 4):
        for q in range(4):
            c = ACC + 16*aa + 4*q
            a(f"ds_read_b128 v[{c}:{c+3}], v12 offset:{(aa-1)*4096 + 1024*q}")
    for aa in range(1, 4):
        a(f"s_waitcnt lgkmcnt({4*(3-aa)})")
        for q in range(8):
            a(f"v_pk_add_f32 v[{ACC+2*q}:{ACC+2*q+1}], v[{ACC+2*q}:{ACC+2*q+1}], v[{ACC+16*aa+2*q}:{ACC+16*aa+2*q+1}]")
    for q in range(8):
        a(f"v_pk_fma_f32 v[{ACC+2*q}:{ACC+2*q+1}], v[{ACC+2*q}:{ACC+2*q+1}], v[{16+2*q}:{17+2*q}], v[{40+2*q}:{41+2*q}]")
    for q in range(8): a(f"v_cvt_pk_bf16_f32 v{32+q}, v{ACC+2*q}, v{ACC+2*q+1}")
    for p in range(2):
        a(f"v_permlane32_swap_b32 v{32+4*p}, v{34+4*p}")
        a(f"v_permlane32_swap_b32 v{33+4*p}, v{35+4*p}")
        a(f"global_store_dwordx4 v1, v[{32+4*p}:{35+4*p}], s[34:35] offset:{32*p}")
    stamp(a, 8)
    endpgm(a, 3)
    a.label("K3_end")
    a("s_endpgm")
    return a.finalize(), kd('k3_kernel', 128 + 176, 102 if STAMP else 80, 128)

KERNELS = [
    ('k1_kernel', gen_k1, 428, 256, K1_LDS),
    ('k2_kernel', gen_k2, 256, 512, K2_LDS),
    ('k3_kernel', gen_k3, 256, 256, K3_LDS),
]
```

```python
import sys
from asmlib import Asm, kd

XT   = 0x000000
ST1  = 0x200000
MOD  = 0x210000
PQ   = 0x220000
ST2  = 0x228000
MODP = 0x230000
ET   = 0x1600000
KR   = 0x300000
X1T  = 0x800000
WGU  = 0xA00000
WD   = 0xD00000
HH   = 0x1000000
LOG2E = 0x3fb8aa3b
INV2PI = 0x3e22f983

import os
STAMP = int(os.environ.get('STAMP', '0'))
DBGO = 0x2000000
def head(a, name):
    a(f".globl {name}\n.p2align 8\n.type {name},@function")
    a.label(name)
    if STAMP:
        a("s_memrealtime s[72:73]")
        a("s_memtime s[74:75]")
        for i in range(2, 14): a(f"s_mov_b32 s{72+2*i}, 0")

def stamp(a, i):
    if STAMP: a(f"s_memrealtime s[{72+2*i}:{73+2*i}]")

def endpgm(a, kidx):
    if STAMP:
        a("s_mov_b64 exec, -1")
        a("s_waitcnt vmcnt(0) lgkmcnt(0)")
        a("s_memrealtime s[100:101]")
        a("s_memtime s[98:99]")
        a("s_waitcnt lgkmcnt(0)")
        a("v_mov_b32 v1, 0")
        for i in range(15): a(f"v_writelane_b32 v1, s{72+2*i}, {i}")
        a("s_getreg_b32 s72, hwreg(HW_REG_XCC_ID)")
        a("v_writelane_b32 v1, s72, 15")
        a(f"s_add_u32 s72, s2, {kidx*1024}")
        a("s_lshl_b32 s72, s72, 9")
        a(f"s_add_u32 s72, s72, {DBGO:#x}")
        a("v_lshrrev_b32 v2, 6, v0")
        a("v_lshlrev_b32 v2, 6, v2")
        a("v_and_b32 v3, 63, v0")
        a("v_lshl_add_u32 v2, v3, 2, v2")
        a("v_add_u32 v2, s72, v2")
        a("s_mov_b64 exec, 0xffff")
        a("global_store_dword v2, v1, s[38:39]")
    a("s_endpgm")

def load_args(a):
    a("s_load_dwordx16 s[8:23], s[0:1], 0")
    a("s_load_dwordx16 s[24:39], s[0:1], 64")

def ws_base(a, sd, off):
    a(f"s_add_u32 s{sd}, s38, {off:#x}")
    a(f"s_addc_u32 s{sd+1}, s39, 0")

def srd(a, sd, sbase, off, size):
    if off:
        a(f"s_add_u32 s{sd}, s{sbase}, {off:#x}")
        a(f"s_addc_u32 s{sd+1}, s{sbase+1}, 0")
    else:
        a(f"s_mov_b32 s{sd}, s{sbase}")
        a(f"s_mov_b32 s{sd+1}, s{sbase+1}")
    a(f"s_mov_b32 s{sd+2}, {size:#x}")
    a(f"s_mov_b32 s{sd+3}, 0x20000")

def code_prefetch(a, vtmp, vdst, nlines_log2=6):
    a("s_getpc_b64 s[4:5]")
    a(f"v_and_b32 v{vtmp}, 63, v0")
    a(f"v_lshlrev_b32 v{vtmp}, 7, v{vtmp}")
    a(f"global_load_dword v{vdst}, v{vtmp}, s[4:5]")

def cmul(a, d, x, w, t):
    a(f"v_pk_mul_f32 v[{t}:{t+1}], v[{x}:{x+1}], v[{w}:{w+1}] op_sel:[1,1] op_sel_hi:[1,0] neg_lo:[1,0]")
    a(f"v_pk_fma_f32 v[{d}:{d+1}], v[{x}:{x+1}], v[{w}:{w+1}], v[{t}:{t+1}] op_sel:[0,0,0] op_sel_hi:[0,1,1]")

def rb1(a, d, s):
    a(f"v_cvt_pk_bf16_f32 v{d}, v{s}, v{s}")
    a(f"v_lshlrev_b32 v{d}, 16, v{d}")

def gen_k0():
    a = Asm()
    head(a, 'k0_kernel')
    load_args(a)
    a("s_cmp_ge_u32 s2, 256")
    a("s_cbranch_scc1 K0_B")
    code_prefetch(a, 1, 127)
    a("s_and_b32 s59, s2, 7")
    a("s_lshl_b32 s59, s59, 5")
    a("s_lshr_b32 s41, s2, 3")
    a("s_add_u32 s59, s59, s41")
    a("s_lshl_b32 s40, s59, 9")
    a("v_lshl_add_u32 v1, v0, 1, s40")
    a("v_lshrrev_b32 v6, 7, v0")
    a("s_lshl_b32 s41, s59, 2")
    a("v_lshl_add_u32 v6, v6, 1, s41")
    a("s_lshl_b32 s42, s2, 13")
    a("s_add_u32 s43, s42, 4096")
    a("v_lshl_add_u32 v8, v0, 2, s43")
    a("v_lshrrev_b32 v9, 5, v0")
    a("v_lshlrev_b32 v9, 10, v9")
    a("v_and_b32 v26, 31, v0")
    a("v_lshl_add_u32 v9, v26, 4, v9")
    a("v_add_u32 v9, s42, v9")
    a("s_waitcnt lgkmcnt(0)")
    a("global_load_ushort v7, v6, s[18:19]")
    a("global_load_ushort v2, v1, s[10:11]")
    a("global_load_ushort v3, v1, s[12:13]")
    a("global_load_ushort v4, v1, s[14:15]")
    a("global_load_ushort v5, v1, s[16:17]")
    for i in range(8):
        a(f"global_load_dword v{10+i}, v8, s[8:9] offset:{i*1024-4096}")
    a("global_load_dwordx4 v[18:21], v9, s[8:9]")
    a("global_load_dwordx4 v[22:25], v9, s[8:9] offset:512")
    ws_base(a, 44, KR)
    ws_base(a, 46, ST1)
    a("s_mul_i32 s48, s59, 18432")
    a("v_lshrrev_b32 v27, 5, v0")
    a("v_mul_u32_u24 v27, 4608, v27")
    a("v_lshl_add_u32 v27, v26, 4, v27")
    a("v_add_u32 v27, s48, v27")
    a("v_add_u32 v27, 0x1000, v27")
    for i in range(4): a(f"v_mov_b32 v{60+i}, 0")
    a("v_cmp_gt_u32 vcc, 128, v0")
    a("s_and_saveexec_b64 s[50:51], vcc")
    a("s_cbranch_execz K0_A_nz")
    a("global_store_dwordx4 v27, v[60:63], s[44:45]")
    a.label("K0_A_nz")
    a("s_mov_b64 exec, -1")
    a("v_lshlrev_b32 v28, 3, v0")
    a("v_sub_u32 v28, 2047, v28")
    for i in range(9):
        a(f"v_subrev_u32 v29, {i}, v28")
        a("v_cvt_f32_u32 v39, v29")
        a("v_cvt_pk_bf16_f32 v39, v39, v39")
        a("v_and_b32 v39, 0xffff, v39")
        a("v_subrev_u32 v39, 0x4280, v39")
        a("v_cmp_gt_u32 vcc, 0x100, v29")
        a(f"v_cndmask_b32 v{30+i}, v39, v29, vcc")
        if i == 8:
            a("v_mov_b32 v39, 0x300")
            a("v_cmp_gt_i32 vcc, 0, v29")
            a("v_cndmask_b32 v38, v38, v39, vcc")
        a(f"v_lshlrev_b32 v{30+i}, 2, v{30+i}")
    a("v_lshrrev_b32 v64, 6, v0")
    a("v_mul_u32_u24 v64, 8704, v64")
    a("v_and_b32 v65, 63, v0")
    a("v_lshl_add_u32 v66, v65, 2, v64")
    a("v_and_b32 v67, 15, v0")
    a("v_bfe_u32 v68, v0, 4, 2")
    a("v_mul_u32_u24 v69, 272, v67")
    a("v_lshl_add_u32 v69, v68, 4, v69")
    a("v_add_u32 v69, v64, v69")
    a("v_and_b32 v70, 1, v68")
    a("v_lshrrev_b32 v71, 1, v68")
    a("v_lshlrev_b32 v72, 5, v67")
    a("v_lshl_add_u32 v72, v70, 4, v72")
    a("v_lshl_add_u32 v72, v71, 9, v72")
    a("v_add_u32 v72, v64, v72")
    a("v_sub_u32 v73, 4, v71")
    a("v_lshlrev_b32 v73, v73, v67")
    a("v_lshl_add_u32 v73, v68, 8, v73")
    a("v_add_u32 v73, v64, v73")
    a("v_mul_u32_u24 v74, 120, v71")
    a("v_add_u32 v74, v73, v74")
    a("v_lshlrev_b32 v75, 2, v67")
    a("v_lshl_add_u32 v75, v68, 8, v75")
    a("v_add_u32 v75, v64, v75")
    a("s_mov_b32 s52, 0x05040100")
    a("s_mov_b32 s53, 0x07060302")
    a(f"s_mov_b32 s54, {LOG2E:#x}")
    a("s_mov_b32 s55, 0x3f803f80")
    stamp(a, 2)
    a("s_waitcnt vmcnt(10)")
    stamp(a, 3)
    for r in (7, 2, 3, 4, 5): a(f"v_lshlrev_b32 v{r}, 16, v{r}")
    a("v_mul_f32 v7, s54, v7")
    a("v_mul_f32 v2, s54, v2")
    a("v_exp_f32 v7, v7")
    a("v_exp_f32 v2, v2")
    a("v_max_f32 v39, abs(v4), abs(v5)")
    a("v_cvt_pk_bf16_f32 v7, v7, v2")
    a("v_and_b32 v2, 0xffff0000, v7")
    a("v_lshlrev_b32 v7, 16, v7")
    for sh in (1, 2, 4, 8):
        a(f"v_max_f32_dpp v39, v39, v39 row_shr:{sh} row_mask:0xf bank_mask:0xf")
    a("v_max_f32_dpp v39, v39, v39 row_bcast:15 row_mask:0xa bank_mask:0xf")
    a("v_max_f32_dpp v39, v39, v39 row_bcast:31 row_mask:0xc bank_mask:0xf")
    a("v_mul_f32 v40, v2, v7")
    a("v_mul_f32 v41, v3, v7")
    a("v_readlane_b32 s56, v39, 63")
    a("v_mul_f32 v40, s54, v40")
    a(f"v_mul_f32 v41, {INV2PI:#x}, v41")
    a("s_lshr_b32 s56, s56, 23")
    a("s_max_u32 s56, s56, 13")
    a("s_min_u32 s56, s56, 254")
    a("s_sub_u32 s57, 267, s56")
    a("s_lshl_b32 s57, s57, 23")
    a("s_sub_u32 s56, s56, 12")
    a("s_lshl_b32 s56, s56, 23")
    def direct(d, p, conj=False):
        import struct
        pf = struct.unpack('<I', struct.pack('<f', float(p)))[0]
        npf = struct.unpack('<I', struct.pack('<f', float(-p)))[0]
        a(f"v_mul_f32 v{d}, {npf:#x}, v40")
        a(f"v_mul_f32 v{d+1}, {(npf if conj else pf):#x}, v41")
        a(f"v_exp_f32 v29, v{d}")
        a(f"v_fract_f32 v{d+1}, v{d+1}")
        a(f"v_cos_f32 v{d}, v{d+1}")
        a(f"v_sin_f32 v{d+1}, v{d+1}")
        a(f"v_mul_f32 v{d}, v{d}, v29")
        a(f"v_mul_f32 v{d+1}, v{d+1}, v29")
    W = {i: 80 + 2*i for i in range(1, 8)}
    W8 = 44; G1 = 46; YA = 48; YB = 50; GA = 52; GB = 54; T0 = 56; T1 = 58; PR = (76, 78)
    direct(W8, 8, conj=True)
    direct(W[1], 1)
    direct(G1, 128)
    a(f"v_mul_f32 v{YA}, s57, v4")
    a(f"v_mul_f32 v{YA+1}, s57, -v5")
    a("v_mul_f32 v7, s56, v7")
    cnt = [0]
    def emit(src, row):
        t = 60 + (cnt[0] & 3); cnt[0] += 1
        a(f"v_cvt_pk_f16_f32 v{t}, v{src}, v{src+1}")
        a(f"ds_write_b32 v66, v{t} offset:{(row % 32)*272}")
    def pair(o1, o2):
        ops = [o for o in (o1, o2) if o]
        for n, (d, x, w, row) in enumerate(ops):
            t = (T0, T1)[n]
            a(f"v_pk_mul_f32 v[{t}:{t+1}], v[{x}:{x+1}], v[{w}:{w+1}] op_sel:[1,1] op_sel_hi:[1,0] neg_lo:[1,0]")
        for n, (d, x, w, row) in enumerate(ops):
            t = (T0, T1)[n]
            a(f"v_pk_fma_f32 v[{d}:{d+1}], v[{x}:{x+1}], v[{w}:{w+1}], v[{t}:{t+1}] op_sel:[0,0,0] op_sel_hi:[0,1,1]")
    pend = []
    def flush():
        ts = []
        for (d, row) in pend:
            t = 60 + (cnt[0] & 3); cnt[0] += 1
            a(f"v_cvt_pk_f16_f32 v{t}, v{d}, v{d+1}"); ts.append((t, row))
        for t, row in ts: a(f"ds_write_b32 v66, v{t} offset:{(row % 32)*272}")
        del pend[:]
    def run(l1, l2):
        for n in range(max(len(l1), len(l2))):
            o1 = l1[n] if n < len(l1) else None
            o2 = l2[n] if n < len(l2) else None
            pair(o1, o2)
            for o in (o1, o2):
                if o and o[3] is not None: pend.append((o[0], o[3]))
            flush()
    a("v_mov_b32 v42, 0x3c00")
    a(f"ds_write_b32 v66, v42 offset:{16*272}")
    emit(YA, 0); emit(W[1], 17); emit(G1, 24)
    chainY = []
    cur, nxt = YA, YB
    for j in range(1, 16):
        chainY.append((nxt, cur, W8, j)); cur, nxt = nxt, cur
    chainX = [(PR[0], W[1], G1, 25)]
    for i in range(2, 8):
        chainX.append((W[i], W[i-1], W[1], 16+i))
        chainX.append((PR[i & 1], W[i], G1, 24+i))
    chainX.append((GA, G1, G1, None))
    run(chainY, chainX)
    a("s_waitcnt lgkmcnt(0)")
    stamp(a, 4)
    FY = 96; FX = 112
    for ks in range(4): a(f"ds_read_b128 v[{FY+4*ks}:{FY+4*ks+3}], v69 offset:{ks*64}")
    for ks in range(4): a(f"ds_read_b128 v[{FX+4*ks}:{FX+4*ks+3}], v69 offset:{16*272 + ks*64}")
    GR = (GA, GB, YA)
    chainG = []; chainP = []
    def g(k): return GR[(k - 2) % 3]
    for k in range(3, 17):
        row = {3: 36, 4: 40, 5: 42, 6: 44, 7: 46}.get(k, 40 + k)
        chainG.append((g(k), g(k-1), G1, row))
    sched = [
        ((g(3), g(2), G1, 36), (PR[0], g(2), W[2], 33)),
        ((PR[1], g(2), W[4], 34), (PR[0], g(2), W[6], 35)),
        ((g(4), g(3), G1, 40), (PR[0], g(3), W[2], 37)),
        ((PR[1], g(3), W[4], 38), (PR[0], g(3), W[6], 39)),
        ((g(5), g(4), G1, 42), (PR[0], g(4), W[4], 41)),
        ((g(6), g(5), G1, 44), (PR[0], g(5), W[4], 43)),
        ((g(7), g(6), G1, 46), (PR[0], g(6), W[4], 45)),
        ((g(8), g(7), G1, 48), (PR[0], g(7), W[4], 47)),
    ]
    a(f"v_mov_b32 v{W[7]}, v{GA}")
    a(f"v_mov_b32 v{W[7]+1}, v{GA+1}")
    G2 = W[7]
    E0 = g(8); O0 = g(7)
    ev = [W[5], W[3]]; od = [W[1], YB]
    prevE, prevO = E0, O0
    for n in range(4):
        de, do = ev[n & 1], od[n & 1]
        sched.append(((do, prevO, G2, 49 + 2*n), (de, prevE, G2, 50 + 2*n)))
        prevE, prevO = de, do
    a("s_waitcnt vmcnt(0)")
    for i in range(4):
        a(f"v_perm_b32 v{2+i}, v{11+2*i}, v{10+2*i}, s52" if False else f"v_perm_b32 v{128+i}, v{11+2*i}, v{10+2*i}, s52")
        a(f"v_perm_b32 v{132+i}, v{11+2*i}, v{10+2*i}, s53")
    a("v_lshl_add_u32 v8, v0, 5, s42")
    a("global_store_dwordx4 v8, v[128:131], s[38:39]")
    a("global_store_dwordx4 v8, v[132:135], s[38:39] offset:16")
    ACC = 136
    a("s_waitcnt lgkmcnt(0)")
    for ks in range(4):
        c = "0" if ks == 0 else f"v[{ACC}:{ACC+3}]"
        a(f"v_mfma_f32_16x16x32_f16 v[{ACC}:{ACC+3}], v[{FX+4*ks}:{FX+4*ks+3}], v[{FY+4*ks}:{FY+4*ks+3}], {c}")
    emit(GA, 32)
    run([p[0] for p in sched], [p[1] for p in sched])
    a("s_waitcnt lgkmcnt(0)")
    FX2 = 76
    for ks in range(4): a(f"ds_read_b128 v[{FX+4*ks}:{FX+4*ks+3}], v69 offset:{ks*64}")
    for ks in range(4): a(f"ds_read_b128 v[{FX2+4*ks}:{FX2+4*ks+3}], v69 offset:{16*272 + ks*64}")
    a("v_mov_b32 v10, 0")
    a("v_mov_b32 v11, 0")
    for i in range(8):
        a(f"v_dot2_f32_bf16 v10, v{18+i}, s55, v10")
        a(f"v_dot2_f32_bf16 v11, v{18+i}, v{18+i}, v11")
    for t, fx in ((1, FX), (2, FX2)):
        a(f"s_waitcnt lgkmcnt({4 if t == 1 else 0})")
        for ks in range(4):
            c = "0" if ks == 0 else f"v[{ACC+4*t}:{ACC+4*t+3}]"
            a(f"v_mfma_f32_16x16x32_f16 v[{ACC+4*t}:{ACC+4*t+3}], v[{fx+4*ks}:{fx+4*ks+3}], v[{FY+4*ks}:{FY+4*ks+3}], {c}")
    for sh in (1, 2, 4, 8):
        a(f"v_add_f32_dpp v10, v10, v10 row_shr:{sh} row_mask:0xf bank_mask:0xf")
        a(f"v_add_f32_dpp v11, v11, v11 row_shr:{sh} row_mask:0xf bank_mask:0xf")
    a("v_add_f32_dpp v10, v10, v10 row_bcast:15 row_mask:0xa bank_mask:0xf")
    a("v_add_f32_dpp v11, v11, v11 row_bcast:15 row_mask:0xa bank_mask:0xf")
    for i in range(12): a(f"v_mul_f32 v{ACC+i}, v{ACC+i}, v7")
    a("v_mov_b32 v60, 0")
    a(f"ds_write_b128 v72, v[{ACC}:{ACC+3}]")
    a(f"ds_write_b64 v73, v[{ACC+4}:{ACC+5}] offset:1024")
    a(f"ds_write_b64 v74, v[{ACC+6}:{ACC+7}] offset:1032")
    for i in range(4): a(f"ds_write_b32 v75, v{ACC+8+i} offset:{2048+64*i}")
    a("ds_write_b32 v64, v60 offset:3072")
    stats_finalize(a, 10, 11, 12, 13, 14)
    a("v_lshrrev_b32 v9, 5, v0")
    a("s_lshl_b32 s40, s2, 6")
    a("v_lshl_add_u32 v9, v9, 3, s40")
    a("s_mov_b32 exec_lo, 0x80000000")
    a("s_mov_b32 exec_hi, 0x80000000")
    a("global_store_dwordx2 v9, v[12:13], s[46:47]")
    a("s_mov_b64 exec, -1")
    a("s_waitcnt lgkmcnt(0)")
    stamp(a, 5)
    a("s_barrier")
    stamp(a, 6)
    a("v_lshl_add_u32 v8, v0, 4, s48")
    a("v_add_u32 v9, 9216, v8")
    for ch in range(2):
        b = 80 + ch*18
        for i in range(9):
            a(f"ds_read2st64_b32 v[{b+2*i}:{b+2*i+1}], v{30+i} offset0:{ch*68} offset1:{ch*68+34}")
        if ch == 0: pass
    for ch in range(2):
        b = 80 + ch*18
        a(f"s_waitcnt lgkmcnt({9 if ch == 0 else 0})")
        for i in range(9): a(f"v_add_f32 v{b+2*i}, v{b+2*i}, v{b+2*i+1}")
        o = 40 + ch*8
        for q in range(4):
            a(f"v_cvt_pk_bf16_f32 v{o+q}, v{b+4*q+2}, v{b+4*q+4}")
            a(f"v_cvt_pk_bf16_f32 v{o+4+q}, v{b+4*q}, v{b+4*q+2}")
        va = 8 + ch
        a(f"global_store_dwordx4 v{va}, v[{o}:{o+3}], s[44:45]")
        a(f"v_add_u32 v{va}, 4608, v{va}")
        a(f"global_store_dwordx4 v{va}, v[{o+4}:{o+7}], s[44:45]")
    stamp(a, 7)
    endpgm(a, 0)
    a.label("K0_B")
    a("s_cmp_ge_u32 s2, 448")
    a("s_cbranch_scc1 K0_C")
    code_prefetch(a, 1, 127)
    a("s_sub_u32 s40, s2, 256")
    a("s_and_b32 s41, s40, 7")
    a("s_lshr_b32 s40, s40, 3")
    a("v_lshrrev_b32 v1, 4, v0")
    a("v_and_b32 v2, 15, v0")
    a("v_mul_u32_u24 v3, 24576, v1")
    a("v_lshl_add_u32 v3, v2, 4, v3")
    a("s_mul_i32 s42, s41, 393216")
    a("s_lshl_b32 s43, s40, 8")
    a("s_add_u32 s42, s42, s43")
    a("v_add_u32 v3, s42, v3")
    a("s_lshl_b32 s42, s41, 7")
    a("v_lshl_add_u32 v4, v1, 3, s42")
    a("s_waitcnt lgkmcnt(0)")
    srd(a, 44, 32, 0, 512*6144)
    a("global_load_dwordx2 v[8:9], v4, s[30:31]")
    for i in range(4):
        a(f"s_mov_b32 s48, {i*6144}")
        a(f"buffer_load_dwordx4 v[{16+4*i}:{19+4*i}], v3, s[44:47], s48 offen")
    a(f"s_mov_b32 s54, {(LOG2E | 0x80000000):#x}")
    a("v_lshrrev_b32 v5, 6, v0")
    a("v_lshlrev_b32 v5, 9, v5")
    a("v_lshl_add_u32 v5, v2, 5, v5")
    a("v_bfe_u32 v6, v0, 4, 1")
    a("v_lshl_add_u32 v5, v6, 3, v5")
    a("v_bfe_u32 v6, v0, 5, 1")
    a("v_lshl_add_u32 v5, v6, 2, v5")
    ws_base(a, 46, MODP)
    a("s_and_b32 s42, s40, 3")
    a("s_lshl_b32 s42, s42, 6")
    a("v_lshrrev_b32 v6, 1, v0")
    a("v_add_u32 v6, s42, v6")
    a("v_mul_u32_u24 v6, 384, v6")
    a("v_and_b32 v7, 1, v0")
    a("v_lshl_add_u32 v6, v7, 5, v6")
    a("s_lshr_b32 s42, s40, 2")
    a("s_lshl_b32 s42, s42, 6")
    a("s_lshl_b32 s43, s41, 2")
    a("s_add_u32 s42, s42, s43")
    a("v_add_u32 v6, s42, v6")
    a("v_lshlrev_b32 v7, 2, v0")
    a("s_waitcnt vmcnt(4)")
    for i in range(2):
        a(f"v_lshlrev_b32 v{48+2*i}, 16, v{8+i}")
        a(f"v_and_b32 v{49+2*i}, 0xffff0000, v{8+i}")
    for i in range(4): a(f"v_mul_f32 v{56+i}, s54, v{48+i}")
    for i in range(4): a(f"v_exp_f32 v{56+i}, v{56+i}")
    for i in range(4): a(f"v_add_f32 v{56+i}, 1.0, v{56+i}")
    for i in range(4): a(f"v_rcp_f32 v{56+i}, v{56+i}")
    for i in range(4): a(f"v_mul_f32 v{48+i}, v{48+i}, v{56+i}")
    for i in range(2):
        a(f"v_cvt_pk_bf16_f32 v{56+i}, v{48+2*i}, v{49+2*i}")
        a(f"v_lshlrev_b32 v{48+2*i}, 16, v{56+i}")
        a(f"v_and_b32 v{49+2*i}, 0xffff0000, v{56+i}")
    for i in range(4):
        a(f"s_waitcnt vmcnt({3-i})")
        for q in range(4):
            a(f"v_lshlrev_b32 v{72+2*q}, 16, v{16+4*i+q}")
            a(f"v_and_b32 v{73+2*q}, 0xffff0000, v{16+4*i+q}")
        for q in range(8):
            if i == 0: a(f"v_mul_f32 v{64+q}, v48, v{72+q}")
            else: a(f"v_fmac_f32 v{64+q}, v{48+i}, v{72+q}")
    for q in range(4): a(f"v_permlane32_swap_b32 v{64+2*q}, v{65+2*q}")
    for q in range(4): a(f"v_add_f32 v{64+2*q}, v{64+2*q}, v{65+2*q}")
    for q in range(2): a(f"v_permlane16_swap_b32 v{64+4*q}, v{66+4*q}")
    for q in range(2): a(f"v_add_f32 v{64+4*q}, v{64+4*q}, v{66+4*q}")
    a("ds_write2_b32 v5, v64, v68 offset0:0 offset1:4")
    a("s_waitcnt lgkmcnt(0)")
    a("s_barrier")
    a("v_cmp_gt_u32 vcc, 128, v0")
    a("s_and_saveexec_b64 s[50:51], vcc")
    a("s_cbranch_execz K0_end")
    a("ds_read2st64_b32 v[16:17], v7 offset0:0 offset1:2")
    a("ds_read2st64_b32 v[18:19], v7 offset0:4 offset1:6")
    a("s_waitcnt lgkmcnt(0)")
    a("v_add_f32 v16, v16, v17")
    a("v_add_f32 v18, v18, v19")
    a("v_add_f32 v16, v16, v18")
    a("global_store_dword v6, v16, s[46:47]")
    endpgm(a, 0)
    a.label("K0_C")
    a("s_sub_u32 s40, s2, 448")
    a("s_and_b32 s41, s40, 3")
    a("s_bfe_u32 s42, s40, 0x10002")
    a("s_mul_i32 s42, s42, 22")
    a("s_lshr_b32 s43, s40, 3")
    a("s_cmp_ge_u32 s43, 22")
    a("s_cbranch_scc1 K0_end")
    a("s_add_u32 s42, s42, s43")
    a("s_cmp_ge_u32 s42, 43")
    a("s_cbranch_scc1 K0_end")
    a("v_lshrrev_b32 v4, 6, v0")
    a("v_and_b32 v1, 15, v0")
    a("v_readfirstlane_b32 s43, v4")
    a("v_bfe_u32 v2, v0, 4, 2")
    a("s_and_b32 s48, s43, 1")
    a("s_lshr_b32 s49, s43, 1")
    a("s_lshl_b32 s50, s41, 4")
    a("s_lshl_b32 s51, s49, 2")
    a("s_add_u32 s50, s50, s51")
    a("v_add_u32 v3, s50, v2")
    a("v_mul_u32_u24 v4, 22016, v3")
    a("v_lshl_add_u32 v4, v1, 2, v4")
    a("s_lshl_b32 s51, s42, 6")
    a("v_add_u32 v4, s51, v4")
    a("s_waitcnt lgkmcnt(0)")
    a("s_cmp_eq_u32 s48, 0")
    a("s_cselect_b32 s44, s24, s26")
    a("s_cselect_b32 s45, s25, s27")
    a(f"s_mov_b32 s46, {512*2752}")
    a("s_mov_b32 s47, 0x20000")
    for t in range(2):
        for i in range(8):
            a(f"s_mov_b32 s52, {t*176128 + i*2752}")
            a(f"buffer_load_dword v{8+8*t+i}, v4, s[44:47], s52 offen")
    ws_base(a, 58, WGU)
    a("s_mov_b32 s52, 0x05040100")
    a("s_mov_b32 s53, 0x07060302")
    a("v_lshrrev_b32 v6, 3, v1")
    a("s_lshl_b32 s51, s42, 1")
    a("v_add_u32 v6, s51, v6")
    a("v_and_b32 v7, 7, v0")
    a("v_lshlrev_b32 v56, 15, v6")
    a("v_lshl_add_u32 v56, v3, 9, v56")
    a("v_lshl_add_u32 v56, v7, 5, v56")
    a("s_lshl_b32 s51, s48, 8")
    a("v_add_u32 v56, s51, v56")
    a("v_add_u32 v57, 4096, v56")
    for t in range(2):
        a(f"s_waitcnt vmcnt({8 if t == 0 else 2})")
        o = 24 + 8*t
        for e in range(2):
            for q in range(4): a(f"v_perm_b32 v{o+4*e+q}, v{9+8*t+2*q}, v{8+8*t+2*q}, s{52+e}")
            a(f"global_store_dwordx4 v{56+t}, v[{o+4*e}:{o+4*e+3}], s[58:59] offset:{16*e}")
    endpgm(a, 0)
    a.label("K0_end")
    a("s_endpgm")
    return a.finalize(), kd('k0_kernel', 152, 102 if STAMP else 64)

def stats_finalize(a, S, SS, R, RM, T):
    a(f"v_mul_f32 v{S}, 0x3b000000, v{S}")
    a(f"v_mul_f32 v{T}, v{S}, v{S}")
    a(f"v_fma_f32 v{SS}, v{SS}, s58, -v{T}" if False else f"v_mul_f32 v{SS}, 0x3b000000, v{SS}")
    a(f"v_sub_f32 v{SS}, v{SS}, v{T}")
    a(f"v_max_f32 v{SS}, 0, v{SS}")
    a(f"v_cvt_pk_bf16_f32 v{T}, v{S}, v{SS}")
    a(f"v_lshlrev_b32 v{S}, 16, v{T}")
    a(f"v_and_b32 v{SS}, 0xffff0000, v{T}")
    a(f"v_add_f32 v{SS}, 0x3727c5ac, v{SS}")
    rb1(a, SS, SS)
    a(f"v_sqrt_f32 v{SS}, v{SS}")
    rb1(a, SS, SS)
    a(f"v_rcp_f32 v{R}, v{SS}")
    a(f"v_mul_f32 v{RM}, -v{S}, v{R}")

KERNELS = [
    ('k0_kernel', gen_k0, 624, 256, 34816),
]

def main(out):
    import gen_rest
    ks = KERNELS + gen_rest.KERNELS
    hdr = open('adaLN_cond__ssm_conv_s4d__glu_gated_geglu__prompt.s.ref').read().split('; Override launch')[0]
    s = hdr
    for n, g, grid, blk, lds in ks:
        s += f"; @launch kernel={n} grid=({grid},1,1) block=({blk},1,1) lds={lds}\n"
    s += '.amdgcn_target "amdgcn-amd-amdhsa--gfx950"\n.text\n'
    kds = []
    for n, g, grid, blk, lds in ks:
        body, k = g()
        s += body + '\n'
        kds.append(k)
    s += ".p2align 8\n.fill 2304, 4, 0xbf810000\n"
    s += '.section .rodata,"a"\n'
    for k in kds: s += '.p2align 6\n' + k + '\n'
    open(out, 'w').write(s)

if __name__ == '__main__':
    main(sys.argv[1] if len(sys.argv) > 1 else 'adaLN_cond__ssm_conv_s4d__glu_gated_geglu__prompt.s')
```

```python
from asmlib import Asm, kd
from gen import *
import struct
def fbits(x): return struct.unpack('<I', struct.pack('<f', float(x)))[0]

K1_KST = 4640; K1_U = 8*K1_KST; K1_UST = 4224; K1_EX = K1_U + 2*K1_UST; K1_LDS = K1_EX + 32768
def gen_k1():
    a = Asm()
    head(a, 'k1_kernel')
    load_args(a)
    a("s_cmp_ge_u32 s2, 256")
    a("s_cbranch_scc1 K1_B")
    code_prefetch(a, 1, 70)
    a("s_and_b32 s40, s2, 7")
    a("s_lshl_b32 s40, s40, 5")
    a("s_lshr_b32 s69, s2, 3")
    a("s_add_u32 s40, s40, s69")
    a("s_lshl_b32 s42, s40, 5")
    a(f"v_mul_u32_u24 v1, {XS}, v0")
    a("v_add_u32 v1, s42, v1")
    a("v_lshlrev_b32 v2, 6, v0")
    a("v_lshrrev_b32 v4, 6, v0")
    a("v_and_b32 v5, 63, v0")
    a("v_readfirstlane_b32 s41, v4")
    a("v_lshlrev_b32 v3, 4, v5")
    a("v_min_u32 v68, 47, v5")
    a("v_lshrrev_b32 v68, 3, v68")
    a("v_and_b32 v69, 7, v0")
    a("v_mul_u32_u24 v69, 12288, v69")
    a("v_lshl_add_u32 v69, v68, 11, v69")
    a("s_lshl_b32 s42, s40, 3")
    a(f"s_add_u32 s42, s42, {MODP:#x}")
    a("v_add_u32 v69, s42, v69")
    a("s_waitcnt lgkmcnt(0)")
    a("global_load_dwordx2 v[72:73], v69, s[38:39]")
    a("global_load_dwordx4 v[8:11], v1, s[38:39]")
    a("global_load_dwordx4 v[12:15], v1, s[38:39] offset:16")
    ws_base(a, 44, ST1)
    for i in range(4): a(f"global_load_dwordx4 v[{16+4*i}:{19+4*i}], v2, s[44:45] offset:{16*i}")
    a("s_lshl_b32 s42, s40, 2")
    a("s_load_dword s68, s[20:21], s42")
    srd(a, 52, 38, KR, 512*4608)
    a("s_lshr_b32 s42, s41, 1")
    a("s_lshl_b32 s43, s40, 1")
    a("s_add_u32 s43, s43, s42")
    a("s_mul_i32 s56, s43, 4608")
    a("s_and_b32 s43, s41, 1")
    a("s_lshl_b32 s48, s43, 2")
    a("s_sub_u32 s56, s56, s48")
    a("s_add_u32 s57, s56, 4")
    a("s_add_u32 s56, s56, 6")
    a(f"s_mul_i32 s58, s41, {2*K1_KST}")
    for e in (1, 0):
        a(f"s_add_u32 m0, s58, {e*K1_KST}")
        for i in range(4):
            a(f"buffer_load_dwordx4 v3, s[52:55], s{56+e} offen offset:{i*1024} lds")
    a("s_add_u32 s56, s56, 4096")
    a("s_add_u32 s57, s57, 4096")
    a("s_mov_b64 exec, 0xffffff")
    for e in range(2):
        a(f"s_add_u32 m0, s58, {e*K1_KST+4096}")
        a(f"buffer_load_dwordx4 v3, s[52:55], s{56+e} offen lds")
    a("s_mov_b64 exec, -1")
    a("v_mov_b32 v71, 0")
    a("v_lshrrev_b32 v6, 5, v5")
    a(f"v_mul_u32_u24 v6, {K1_UST}, v6")
    a("v_and_b32 v7, 31, v0")
    a("v_lshl_add_u32 v6, v7, 2, v6")
    a(f"ds_write_b32 v6, v71 offset:{K1_U}")
    ACC = 208; FB = (80, 144)
    a("v_and_b32 v6, 3, v0")
    a(f"v_mul_u32_u24 v6, {K1_KST}, v6")
    a("v_bfe_u32 v7, v0, 2, 2")
    a("v_lshlrev_b32 v7, 7, v7")
    a("v_sub_u32 v6, v6, v7")
    a("v_bfe_u32 v4, v0, 4, 2")
    a("v_lshl_add_u32 v6, v4, 4, v6")
    a(f"s_mul_i32 s48, s42, {4*K1_KST}")
    a("s_lshl_b32 s49, s43, 8")
    a("s_sub_u32 s48, s48, s49")
    a("s_add_u32 s48, s48, 640")
    a("v_add_u32 v6, s48, v6")
    a("v_and_b32 v7, 15, v0")
    a("v_lshlrev_b32 v7, 3, v7")
    a("v_lshl_add_u32 v7, v4, 4, v7")
    a(f"s_mul_i32 s48, s42, {K1_UST}")
    a("s_sub_u32 s48, s48, s49")
    a(f"s_add_u32 s48, s48, {K1_U + 456 - 192}")
    a("v_add_u32 v7, s48, v7")
    a("v_lshlrev_b32 v2, 4, v0")
    a("v_cmp_eq_u32 vcc, 1, v68")
    a("v_cmp_eq_u32 s[46:47], 4, v68")
    a("s_or_b64 vcc, vcc, s[46:47]")
    a("v_cndmask_b32 v65, 0, 1.0, vcc")
    a("s_lshl_b32 s48, s40, 3")
    a(f"s_add_u32 s48, s48, {MOD:#x}")
    a("v_lshl_add_u32 v64, v68, 11, s48")
    stamp(a, 2)
    a("s_waitcnt vmcnt(16)")
    for sh in (1, 2, 4):
        a(f"v_add_f32_dpp v72, v72, v72 row_shr:{sh} row_mask:0xf bank_mask:0xf")
        a(f"v_add_f32_dpp v73, v73, v73 row_shr:{sh} row_mask:0xf bank_mask:0xf")
    a("v_cvt_pk_bf16_f32 v73, v72, v73")
    a("v_lshlrev_b32 v72, 16, v73")
    a("v_and_b32 v73, 0xffff0000, v73")
    a("v_add_f32 v72, v72, v65")
    a("v_add_f32 v73, v73, v65")
    a("v_cvt_pk_bf16_f32 v73, v72, v73")
    a("v_lshlrev_b32 v72, 16, v73")
    a("v_and_b32 v73, 0xffff0000, v73")
    for i, sl in enumerate((0, 1, 2, 4)):
        a(f"v_readlane_b32 s{60+2*i}, v72, {8*sl+7}")
        a(f"v_readlane_b32 s{61+2*i}, v73, {8*sl+7}")
    a("s_waitcnt lgkmcnt(0)")
    a("s_lshl_b32 s48, s68, 16")
    a("s_and_b32 s49, s68, 0xffff0000")
    a("v_mov_b32 v66, s48")
    a("v_mov_b32 v67, s49")
    a("v_mov_b32 v74, s60")
    a("v_mov_b32 v75, s61")
    a("v_mul_f32 v66, s64, v66")
    a("v_mul_f32 v67, s65, v67")
    a("s_waitcnt vmcnt(10)")
    stamp(a, 3)
    for ch in range(2):
        for q in range(4):
            a(f"v_lshlrev_b32 v{32+8*ch+2*q}, 16, v{8+4*ch+q}")
            a(f"v_and_b32 v{33+8*ch+2*q}, 0xffff0000, v{8+4*ch+q}")
        for l in range(8): a(f"v_fma_f32 v{48+8*ch+l}, v{32+8*ch+l}, v{16+2*l}, v{17+2*l}")
        for l in range(8): a(f"v_fma_f32 v{48+8*ch+l}, v{48+8*ch+l}, s{62+ch}, v{74+ch}")
        for q in range(4): a(f"v_cvt_pk_bf16_f32 v{8+4*ch+q}, v{48+8*ch+2*q}, v{49+8*ch+2*q}")
        a(f"ds_write_b128 v2, v[{8+4*ch}:{11+4*ch}] offset:{K1_U + ch*K1_UST + 128}")
    stamp(a, 4)
    a("s_waitcnt vmcnt(0) lgkmcnt(0)")
    stamp(a, 5)
    a("s_barrier")
    stamp(a, 6)
    def reads(rr):
        B = FB[rr & 1]; ro = 64*(3-rr); L = []
        for n in range(8):
            i = n; j = 7 - n
            L.append(f"ds_read_b128 v[{B+4*i}:{B+4*i+3}], v6 offset:{512*(7-i)+ro}")
            L.append(f"ds_read_b64 v[{B+32+4*j}:{B+32+4*j+1}], v7 offset:{512*j+ro}")
            L.append(f"ds_read_b64 v[{B+32+4*j+2}:{B+32+4*j+3}], v7 offset:{512*j+ro+8}")
        return L
    for t in reads(0): a(t)
    a("s_mov_b32 exec_lo, 0")
    a("s_mov_b32 exec_hi, 0x8000")
    a("global_store_dwordx2 v64, v[72:73], s[38:39]")
    a("s_mov_b64 exec, -1")
    for ch in range(2):
        for l in range(8): a(f"v_fmac_f32 v{32+8*ch+l}, v{48+8*ch+l}, v{66+ch}")
    a(".p2align 3")
    for rr in range(4):
        B = FB[rr & 1]
        nxt = reads(rr+1) if rr < 3 else []
        n = 0
        for j in range(7, -1, -1):
            if rr == 0:
                issued_next = min(len(nxt), n)
                w = 24 - 3*(8-j) + issued_next
                if w <= 15: a(f"s_waitcnt lgkmcnt({w})"); a("s_nop 0")
                else: a("s_waitcnt lgkmcnt(15)"); a("s_nop 0")
            elif j == 7:
                a("s_waitcnt lgkmcnt(0)"); a("s_nop 0")
            for i in range(8-j):
                c = ACC + 4*(i+j)
                first = rr == 0 and (i == 0)
                cc = "0" if first else f"v[{c}:{c+3}]"
                a(f"v_mfma_f32_16x16x32_bf16 v[{c}:{c+3}], v[{B+4*i}:{B+4*i+3}], v[{B+32+4*j}:{B+32+4*j+3}], {cc}")
                if (rr > 0 or j <= 3) and n < len(nxt): a(nxt[n]); n += 1
        while n < len(nxt): a(nxt[n]); n += 1
    stamp(a, 7)
    a("s_lshl_b32 s48, s41, 13")
    a("v_add_u32 v3, s48, v3")
    a("v_lshlrev_b32 v2, 5, v0")
    ws_base(a, 44, X1T)
    ws_base(a, 46, ET)
    a("v_lshrrev_b32 v1, 3, v0")
    a("v_lshlrev_b32 v1, 16, v1")
    a("v_and_b32 v4, 7, v0")
    a("v_lshl_add_u32 v1, v4, 4, v1")
    a("s_lshl_b32 s42, s40, 8")
    a("v_add_u32 v1, s42, v1")
    a(f"v_add_u32 v2, {K1_EX}, v2")
    for t in range(8):
        a(f"ds_write_b128 v3, v[{ACC+4*t}:{ACC+4*t+3}] offset:{K1_EX + 1024*t}")
    a("s_waitcnt lgkmcnt(0)")
    a("s_barrier")
    stamp(a, 8)
    for w in range(4):
        for q in range(2):
            r = 80 + 8*w + 4*q
            a(f"ds_read_b128 v[{r}:{r+3}], v2 offset:{8192*w + 16*q}")
    for ch in range(2):
        a(f"s_waitcnt lgkmcnt({4 if ch == 0 else 0})")
        for l in range(8): a(f"v_add_f32 v{80+16*ch+l}, v{80+16*ch+l}, v{88+16*ch+l}")
        for l in range(8): a(f"v_fmac_f32 v{32+8*ch+l}, s{64+ch}, v{80+16*ch+l}")
        for l in range(8): a(f"v_mul_f32 v{48+8*ch+l}, s{66+ch}, v{32+8*ch+l}")
        for q in range(4): a(f"v_cvt_pk_bf16_f32 v{16+4*ch+q}, v{48+8*ch+2*q}, v{49+8*ch+2*q}")
        a(f"global_store_dwordx4 v1, v[{16+4*ch}:{19+4*ch}], s[46:47] offset:{128*ch}")
        for q in range(4): a(f"v_cvt_pk_bf16_f32 v{8+4*ch+q}, v{32+8*ch+2*q}, v{33+8*ch+2*q}")
        a(f"global_store_dwordx4 v1, v[{8+4*ch}:{11+4*ch}], s[44:45] offset:{128*ch}")
    stamp(a, 9)
    endpgm(a, 1)
    a.label("K1_B")
    a("s_cmp_ge_u32 s2, 432")
    a("s_cbranch_scc1 K1_C")
    a("s_sub_u32 s40, s2, 256")
    a("s_and_b32 s41, s40, 3")
    a("s_bfe_u32 s42, s40, 0x10002")
    a("s_mul_i32 s42, s42, 22")
    a("s_lshr_b32 s43, s40, 3")
    a("s_add_u32 s42, s42, s43")
    a("s_cmp_ge_u32 s42, 43")
    a("s_cbranch_scc1 K1_end")
    code_prefetch(a, 1, 70)
    a("v_lshrrev_b32 v4, 6, v0")
    a("v_and_b32 v1, 15, v0")
    a("v_readfirstlane_b32 s43, v4")
    a("v_bfe_u32 v2, v0, 4, 2")
    a("s_and_b32 s48, s43, 1")
    a("s_lshr_b32 s49, s43, 1")
    a("s_lshl_b32 s50, s41, 4")
    a("s_lshl_b32 s51, s49, 2")
    a("s_add_u32 s50, s50, s51")
    a("v_add_u32 v3, s50, v2")
    a("v_mul_u32_u24 v4, 22016, v3")
    a("v_lshl_add_u32 v4, v1, 2, v4")
    a("s_lshl_b32 s51, s42, 6")
    a("v_add_u32 v4, s51, v4")
    a("v_and_b32 v5, 127, v0")
    a("v_lshlrev_b32 v5, 2, v5")
    a("s_lshl_b32 s51, s49, 11")
    a("s_lshl_b32 s52, s41, 9")
    a("s_add_u32 s51, s51, s52")
    a("v_add_u32 v5, s51, v5")
    a("s_waitcnt lgkmcnt(0)")
    srd(a, 56, 38, MODP + 3*2048, 8*12288)
    for i in range(8):
        a(f"s_mov_b32 s52, {i*12288}")
        a(f"buffer_load_dword v{24+i}, v5, s[56:59], s52 offen")
    a("s_cmp_eq_u32 s48, 0")
    a("s_cselect_b32 s44, s24, s26")
    a("s_cselect_b32 s45, s25, s27")
    a(f"s_mov_b32 s46, {512*2752}")
    a("s_mov_b32 s47, 0x20000")
    for t in range(2):
        for i in range(8):
            a(f"s_mov_b32 s52, {t*176128 + i*2752}")
            a(f"buffer_load_dword v{8+8*t+i}, v4, s[44:47], s52 offen")
    ws_base(a, 58, WGU)
    a("s_mov_b32 s52, 0x05040100")
    a("s_mov_b32 s53, 0x07060302")
    a("v_lshrrev_b32 v6, 3, v1")
    a("s_lshl_b32 s51, s42, 1")
    a("v_add_u32 v60, s51, v6")
    a("v_and_b32 v7, 7, v0")
    a(f"v_mul_u32_u24 v56, {FS}, v60")
    a("v_lshl_add_u32 v56, v3, 9, v56")
    a("v_lshl_add_u32 v56, v7, 4, v56")
    a("s_lshl_b32 s51, s48, 8")
    a("v_add_u32 v56, s51, v56")
    a("v_add_u32 v57, 4096, v56")
    a("v_lshlrev_b32 v58, 8, v6")
    a("v_and_b32 v59, 1, v2")
    a("v_lshl_add_u32 v58, v59, 7, v58")
    a("v_lshl_add_u32 v58, v7, 2, v58")
    a("v_lshrrev_b32 v59, 1, v2")
    a("v_lshl_add_u32 v58, v59, 5, v58")
    a("s_lshl_b32 s51, s48, 6")
    a("s_lshl_b32 s54, s49, 9")
    a("s_add_u32 s51, s51, s54")
    a("v_add_u32 v58, s51, v58")
    a("s_cmp_eq_u32 s49, 1")
    a("s_cselect_b32 s54, 1.0, 0")
    a("v_lshlrev_b32 v61, 1, v0")
    a("s_lshl_b32 s51, s49, 2")
    a("v_add_u32 v62, s51, v2")
    a("v_lshlrev_b32 v62, 4, v62")
    a("s_waitcnt vmcnt(16)")
    for i in range(4): a(f"v_add_f32 v{24+i}, v{24+i}, v{28+i}")
    a("v_add_f32 v24, v24, v25")
    a("v_add_f32 v26, v26, v27")
    a("v_add_f32 v24, v24, v26")
    rb1(a, 24, 24)
    a("v_add_f32 v24, s54, v24")
    a("v_cvt_pk_bf16_f32 v24, v24, v24")
    a("ds_write_b16 v61, v24")
    a("s_waitcnt lgkmcnt(0)")
    a("s_barrier")
    for t in range(2):
        a(f"ds_read_b128 v[{32+8*t}:{35+8*t}], v62 offset:{128*t}")
        a(f"ds_read_b128 v[{36+8*t}:{39+8*t}], v62 offset:{256+128*t}")
    for i in range(4): a(f"v_mov_b32 v{64+i}, 0")
    for t in range(2):
        a(f"s_waitcnt vmcnt({8 if t == 0 else 2}) lgkmcnt(0)")
        o = 80 + 8*t
        for e in range(2):
            for q in range(4): a(f"v_perm_b32 v{o+4*e+q}, v{9+8*t+2*q}, v{8+8*t+2*q}, s{52+e}")
            a(f"global_store_dwordx4 v{56+t}, v[{o+4*e}:{o+4*e+3}], s[58:59] offset:{128*e}")
        for q in range(4):
            for e in range(2):
                a(f"v_dot2_f32_bf16 v{64+e}, v{o+4*e+q}, v{36+8*t+q}, v{64+e}")
                a(f"v_dot2_f32_bf16 v{66+e}, v{o+4*e+q}, v{32+8*t+q}, v{66+e}")
    a("v_permlane32_swap_b32 v64, v65")
    a("v_permlane32_swap_b32 v66, v67")
    a("v_add_f32 v64, v64, v65")
    a("v_add_f32 v66, v66, v67")
    a("v_permlane16_swap_b32 v64, v66")
    a("v_add_f32 v64, v64, v66")
    a("ds_write_b32 v58, v64 offset:1024")
    a("v_lshlrev_b32 v3, 2, v0")
    a("s_mul_i32 s51, s41, 22528")
    a("s_lshl_b32 s54, s42, 9")
    a("s_add_u32 s51, s51, s54")
    a(f"s_add_u32 s51, s51, {PQ:#x}")
    a("v_add_u32 v7, s51, v3")
    a("s_waitcnt lgkmcnt(0)")
    a("s_barrier")
    a("s_cmp_ge_u32 s43, 2")
    a("s_cbranch_scc1 K1_end")
    a("ds_read2st64_b32 v[16:17], v3 offset0:4 offset1:6")
    a("s_waitcnt lgkmcnt(0)")
    a("v_add_f32 v16, v16, v17")
    a("global_store_dword v7, v16, s[38:39]")
    endpgm(a, 1)
    a.label("K1_C")
    a("s_cmp_ge_u32 s2, 475")
    a("s_cbranch_scc1 K1_end")
    a("s_sub_u32 s40, s2, 432")
    a("s_lshl_b32 s41, s40, 15")
    a("s_add_u32 s41, s41, 4096")
    a("v_lshl_add_u32 v1, v0, 2, s41")
    for i in range(3): a(f"v_add_u32 v{2+i}, {8192*(i+1)}, v1")
    a("s_waitcnt lgkmcnt(0)")
    for i in range(32):
        a(f"global_load_dword v{8+i}, v{1 + i//8}, s[28:29] offset:{(i%8)*1024-4096}")
    ws_base(a, 44, WD)
    a("s_mov_b32 s52, 0x05040100")
    a("s_mov_b32 s53, 0x07060302")
    a("v_lshrrev_b32 v6, 4, v0")
    a("v_mul_u32_u24 v6, 88064, v6")
    a("v_and_b32 v7, 15, v0")
    a("v_lshl_add_u32 v6, v7, 4, v6")
    a("s_lshl_b32 s41, s40, 11")
    a("v_add_u32 v6, s41, v6")
    for kk in range(2):
        a(f"s_waitcnt vmcnt({16 if kk == 0 else 4})")
        for h in range(2):
            rows = [8*h, 8*h+2, 8*h+4, 8*h+6]
            for e in range(2):
                o = 40 + kk*16 + (h*2+e)*4
                for q, r in enumerate(rows):
                    a(f"v_perm_b32 v{o+q}, v{8+16*kk+r+1}, v{8+16*kk+r}, s{52+e}")
                a(f"global_store_dwordx4 v6, v[{o}:{o+3}], s[44:45] offset:{kk*1024+h*512+e*256}")
    endpgm(a, 1)
    a.label("K1_end")
    a("s_endpgm")
    return a.finalize(), kd('k1_kernel', 240, 102 if STAMP else 72)

K2_SLOT = 20480; K2_NS = 7; K2_D = 2
K2_PQ = K2_SLOT*K2_NS; K2_SY = K2_PQ + 2048; K2_STP = K2_SY + 64; K2_LDS = K2_STP + 4096
def gen_k2():
    a = Asm()
    head(a, 'k2_kernel')
    a("s_load_dwordx4 s[36:39], s[0:1], 112")
    a("s_and_b32 s40, s2, 7")
    a("s_lshr_b32 s69, s2, 3")
    a("s_cmp_ge_u32 s69, 32")
    a("s_cbranch_scc1 K2_end")
    code_prefetch(a, 1, 255)
    a("v_lshrrev_b32 v4, 6, v0")
    a("v_and_b32 v5, 63, v0")
    a("v_readfirstlane_b32 s43, v4")
    a("v_lshlrev_b32 v3, 4, v5")
    a("v_bfe_u32 v6, v0, 5, 1")
    a("v_lshlrev_b32 v6, 10, v6")
    a("v_bfe_u32 v7, v0, 2, 2")
    a("v_lshl_add_u32 v6, v7, 7, v6")
    a("v_bfe_u32 v7, v0, 3, 1")
    a("v_lshl_add_u32 v6, v7, 6, v6")
    a("v_bfe_u32 v7, v0, 4, 1")
    a("v_lshl_add_u32 v6, v7, 5, v6")
    a("v_lshlrev_b32 v4, 6, v7")
    a("v_xor_b32 v4, v4, v3")
    a("v_and_b32 v7, 3, v0")
    a("v_lshl_add_u32 v6, v7, 3, v6")
    a("s_cmp_lt_u32 s69, 2")
    a("s_cbranch_scc1 K2_stat")
    a("s_sub_u32 s41, s69, 2")
    a("s_cmp_ge_u32 s40, 6")
    a("s_cbranch_scc1 K2_m2")
    a("s_mul_i32 s42, s41, 52")
    a("s_lshr_b32 s42, s42, 8")
    a("s_mul_i32 s44, s42, 5")
    a("s_sub_u32 s41, s41, s44")
    a("s_cmp_ge_u32 s40, 3")
    a("s_cselect_b32 s44, 3, 0")
    a("s_sub_u32 s40, s40, s44")
    a("s_mul_i32 s40, s40, 5")
    a("s_add_u32 s41, s41, s40")
    a("s_lshl_b32 s44, s44, 1")
    a("s_add_u32 s40, s42, s44")
    a("s_branch K2_m3")
    a.label("K2_m2")
    a("s_sub_u32 s40, s40, 6")
    a("s_mul_i32 s40, s40, 30")
    a("s_add_u32 s41, s41, s40")
    a("s_and_b32 s40, s41, 3")
    a("s_add_u32 s40, s40, 12")
    a("s_lshr_b32 s41, s41, 2")
    a.label("K2_m3")
    a("s_and_b32 s44, s43, 3")
    a("s_mul_i32 s45, s41, 6")
    a("s_lshl_b32 s46, s40, 2")
    a("s_cmp_ge_u32 s43, 4")
    a("s_cbranch_scc0 K2_comp")
    a("s_mul_i32 s47, s44, 3")
    for b in range(3):
        a(f"s_add_u32 s48, s47, {b}")
        a("s_lshr_b32 s49, s48, 1")
        a("s_add_u32 s49, s49, s45")
        a(f"s_mul_i32 s49, s49, {FS}")
        a("s_and_b32 s48, s48, 1")
        a("s_lshl_b32 s48, s48, 10")
        a("s_add_u32 s49, s49, s48")
        a(f"s_sub_u32 s49, s49, {b*1024}")
        a(f"v_add_u32 v{8+b}, s49, v3")
    a("s_lshl_b32 s49, s40, 1")
    a("s_lshr_b32 s48, s44, 1")
    a("s_add_u32 s49, s49, s48")
    a("s_lshl_b32 s49, s49, 16")
    a("s_and_b32 s48, s44, 1")
    a("s_lshl_b32 s48, s48, 11")
    a("s_add_u32 s49, s49, s48")
    a("v_add_u32 v11, s49, v4")
    a("s_lshl_b32 s60, s47, 10")
    a("s_add_u32 s60, s60, 8192")
    a("s_lshl_b32 s61, s44, 11")
    a("s_mov_b32 s62, 0")
    a("s_mov_b32 s63, 0")
    a("s_mov_b32 s65, 0")
    a("s_lshl_b32 s64, s44, 2")
    a(f"s_add_u32 s64, s64, {K2_SY}")
    a("v_mov_b32 v13, s64")
    a(f"v_mov_b32 v14, {K2_SY+16}")
    a("s_mul_i32 s64, s44, 384")
    a("s_lshl_b32 s66, s45, 8")
    a("s_add_u32 s66, s66, s64")
    a("v_min_u32 v12, 23, v5")
    a("v_lshl_add_u32 v15, v12, 4, s64")
    a(f"v_add_u32 v15, {K2_PQ}, v15")
    a("v_lshl_add_u32 v12, v12, 4, s66")
    a("s_waitcnt lgkmcnt(0)")
    srd(a, 48, 38, ET, 32*LS)
    srd(a, 52, 38, WGU, 86*FS)
    def issue():
        a("s_add_u32 m0, s63, s61")
        a("s_lshl_b32 s66, s62, 1")
        a("buffer_load_dwordx4 v11, s[48:51], s66 offen lds")
        a("buffer_load_dwordx4 v11, s[48:51], s66 offen offset:1024 lds")
        a("s_add_u32 s65, s65, 1")
        a("s_add_u32 m0, s63, s60")
        a(f"s_add_u32 s63, s63, {K2_SLOT}")
        for b in range(3):
            a(f"buffer_load_dwordx4 v{8+b}, s[52:55], s62 offen offset:{b*1024} lds")
        a("s_add_u32 s62, s62, 2048")
        a(f"s_cmp_ge_u32 s63, {K2_SLOT*K2_NS}")
        a("s_cselect_b32 s63, 0, s63")
    issue()
    a("s_barrier")
    for d in range(K2_D - 1): issue()
    a.label("K2_lloop")
    a(f"s_cmp_lt_u32 s65, {K2_NS}")
    a("s_cbranch_scc1 K2_lgo")
    a(f"s_sub_u32 s67, s65, {K2_NS}")
    a.label("K2_lwait")
    a("ds_read_b128 v[16:19], v14")
    a("s_waitcnt lgkmcnt(0)")
    a("v_min3_u32 v16, v16, v17, v18")
    a("v_min_u32 v16, v16, v19")
    a("v_readfirstlane_b32 s68, v16")
    a("s_cmp_gt_u32 s68, s67")
    a("s_cbranch_scc0 K2_lwait")
    a.label("K2_lgo")
    issue()
    a(f"s_sub_u32 s67, s65, {K2_D}")
    a("v_mov_b32 v20, s67")
    a(f"s_waitcnt vmcnt({5*K2_D})")
    a("ds_write_b32 v13, v20")
    a("s_cmp_lt_u32 s65, 16")
    a("s_cbranch_scc1 K2_lloop")
    stamp(a, 2)
    srd(a, 56, 38, PQ, 4*22528)
    for i in range(4):
        a(f"s_mov_b32 s64, {22528*i}")
        a(f"buffer_load_dwordx4 v[{24+4*i}:{27+4*i}], v12, s[56:59], s64 offen")
    for d in range(K2_D - 1, -1, -1):
        a(f"v_mov_b32 v20, {16-d if d else 64}")
        a(f"s_waitcnt vmcnt({5*d+4})")
        a("ds_write_b32 v13, v20")
    srd(a, 56, 38, WD, 16*86*1024)
    a("s_and_b32 s47, s2, 1")
    a("s_mul_i32 s47, s47, 704512")
    a("s_mul_i32 s64, s69, 22016")
    a("s_add_u32 s47, s47, s64")
    a("v_and_b32 v12, 0xff, v0")
    a("v_min_u32 v12, 171, v12")
    a("v_lshlrev_b32 v12, 7, v12")
    a("buffer_load_dword v21, v12, s[56:59], s47 offen")
    a("s_waitcnt vmcnt(1)")
    for i in range(4):
        a(f"v_add_f32 v{24+i}, v{24+i}, v{28+i}")
        a(f"v_add_f32 v{32+i}, v{32+i}, v{36+i}")
    for i in range(4): a(f"v_add_f32 v{24+i}, v{24+i}, v{32+i}")
    a("ds_write_b128 v15, v[24:27]")
    a("s_waitcnt lgkmcnt(0)")
    stamp(a, 3)
    a("s_barrier")
    endpgm(a, 2)
    a.label("K2_stat")
    a("s_lshl_b32 s40, s40, 1")
    a("s_add_u32 s40, s40, s69")
    a("s_lshl_b32 s46, s40, 17")
    a("s_lshl_b32 s47, s43, 14")
    a("s_add_u32 s46, s46, s47")
    a("s_mov_b32 s66, 0x3f803f80")
    a("v_add_u32 v12, s47, v6")
    a("v_xor_b32 v13, 64, v12")
    for i in range(8): a(f"v_mov_b32 v{40+i}, 0")
    a("s_waitcnt lgkmcnt(0)")
    srd(a, 48, 38, X1T, 32*LS)
    for g in range(4):
        a(f"s_add_u32 m0, s47, {4096*g}")
        for i in range(4): a(f"buffer_load_dwordx4 v4, s[48:51], s46 offen offset:{1024*i} lds")
        a("s_add_u32 s46, s46, 4096")
    stamp(a, 2)
    for g in range(5):
        if g < 4:
            B = 48 + 16*(g & 1)
            a(f"s_waitcnt vmcnt({12-4*g})")
            for i in range(4):
                a(f"ds_read_b64_tr_b16 v[{B+4*i}:{B+1+4*i}], v{12+(i&1)} offset:{4096*g+2048*(i>>1)}")
                a(f"ds_read_b64_tr_b16 v[{B+2+4*i}:{B+3+4*i}], v{12+(i&1)} offset:{4096*g+2048*(i>>1)+512}")
        if g == 4: stamp(a, 3)
        if g > 0:
            B = 48 + 16*((g-1) & 1)
            a(f"s_waitcnt lgkmcnt({8 if g < 4 else 0})")
            for q in range(4):
                for i in range(4):
                    a(f"v_dot2_f32_bf16 v{40+2*i}, v{B+4*i+q}, s66, v{40+2*i}")
                    a(f"v_dot2_f32_bf16 v{41+2*i}, v{B+4*i+q}, v{B+4*i+q}, v{41+2*i}")
    for i in range(4): a(f"v_add_f32 v{40+i}, v{40+i}, v{44+i}")
    stamp(a, 4)
    a("v_permlane32_swap_b32 v40, v41")
    a("v_permlane32_swap_b32 v42, v43")
    a("s_lshl_b32 s47, s43, 9")
    a(f"s_add_u32 s47, s47, {K2_STP}")
    a("v_lshl_add_u32 v14, v5, 2, s47")
    a("v_add_f32 v40, v40, v41")
    a("v_add_f32 v42, v42, v43")
    a("ds_write2st64_b32 v14, v40, v42 offset0:0 offset1:1")
    a("v_bfe_u32 v17, v0, 6, 1")
    a("v_lshlrev_b32 v17, 11, v17")
    a("v_bfe_u32 v18, v0, 5, 1")
    a("v_lshl_add_u32 v17, v18, 8, v17")
    a("v_and_b32 v18, 31, v0")
    a("v_lshl_add_u32 v17, v18, 2, v17")
    a(f"v_add_u32 v17, {K2_STP}, v17")
    a("v_add_u32 v18, 128, v17")
    a("s_lshl_b32 s66, s40, 10")
    a(f"s_add_u32 s66, s66, {ST2:#x}")
    a("v_lshl_add_u32 v16, v0, 3, s66")
    a("s_waitcnt lgkmcnt(0)")
    a("s_barrier")
    a("s_cmp_ge_u32 s43, 2")
    a("s_cbranch_scc1 K2_end")
    a("ds_read2st64_b32 v[20:21], v17 offset0:0 offset1:2")
    a("ds_read2st64_b32 v[22:23], v17 offset0:4 offset1:6")
    a("ds_read2st64_b32 v[24:25], v18 offset0:0 offset1:2")
    a("ds_read2st64_b32 v[26:27], v18 offset0:4 offset1:6")
    a("s_waitcnt lgkmcnt(0)")
    a("v_add_f32 v20, v20, v21")
    a("v_add_f32 v22, v22, v23")
    a("v_add_f32 v24, v24, v25")
    a("v_add_f32 v26, v26, v27")
    a("v_add_f32 v20, v20, v22")
    a("v_add_f32 v21, v24, v26")
    stats_finalize(a, 20, 21, 22, 23, 24)
    stamp(a, 5)
    a("global_store_dwordx2 v16, v[22:23], s[38:39] sc1")
    a("s_lshl_b32 s66, s40, 2")
    a("v_mov_b32 v13, s66")
    a("v_mov_b32 v14, 1")
    a("s_waitcnt vmcnt(0)")
    a("s_barrier")
    a("s_cmp_ge_u32 s43, 1")
    a("s_cbranch_scc1 K2_end")
    a("s_mov_b64 exec, 1")
    a("global_store_dword v13, v14, s[36:37] sc1")
    endpgm(a, 2)
    a.label("K2_comp")
    ACC = 64; S0 = 8; S1 = 28; PQR = 160; STR = 224
    a("v_mov_b32 v64, 0")
    a("v_and_b32 v1, 7, v0")
    a("v_lshlrev_b32 v1, 2, v1")
    a(f"v_add_u32 v1, {K2_SY}, v1")
    a("ds_write_b32 v1, v64")
    a("s_waitcnt lgkmcnt(0)")
    a("s_barrier")
    for i in range(96): a(f"v_mov_b32 v{ACC+i}, 0")
    a("s_and_b32 s47, s44, 1")
    a("s_lshr_b32 s48, s44, 1")
    a("s_lshl_b32 s49, s47, 12")
    a("v_add_u32 v6, s49, v6")
    a("s_mul_i32 s49, s48, 6144")
    a("s_add_u32 s49, s49, 8192")
    a("v_add_u32 v7, s49, v3")
    a("v_mov_b32 v1, v6")
    a("v_xor_b32 v58, 64, v6")
    a("v_mov_b32 v2, v7")
    a("s_mov_b32 s65, 0")
    a("s_mov_b32 s67, 0")
    a("s_mov_b32 s68, 11")
    a("s_lshl_b32 s66, s40, 2")
    a("v_mov_b32 v48, s66")
    a("v_and_b32 v49, 31, v0")
    a("s_lshl_b32 s66, s40, 10")
    a("s_lshl_b32 s49, s47, 9")
    a("s_add_u32 s66, s66, s49")
    a(f"s_add_u32 s66, s66, {ST2:#x}")
    a("v_lshl_add_u32 v49, v49, 3, s66")
    def rd(S, ksub):
        L = []
        L.append(f"ds_read_b128 v[{S}:{S+3}], v2 offset:{ksub*1024}")
        for nt in range(2):
            r = S + 12 + 4*nt
            L.append(f"ds_read_b64_tr_b16 v[{r}:{r+1}], v{(1, 58)[nt]} offset:{ksub*2048}")
            L.append(f"ds_read_b64_tr_b16 v[{r+2}:{r+3}], v{(1, 58)[nt]} offset:{ksub*2048+512}")
        for f in (1, 2): L.append(f"ds_read_b128 v[{S+4*f}:{S+4*f+3}], v2 offset:{f*2048+ksub*1024}")
        return L
    def mf(S, u):
        f = u >> 1; nt = u & 1
        c = ACC + 16*u; r = S + 12 + 4*nt
        a(f"v_mfma_f32_32x32x16_bf16 v[{c}:{c+15}], v[{S+4*f}:{S+4*f+3}], v[{r}:{r+3}], v[{c}:{c+15}]")
    a(f"v_mov_b32 v51, {K2_SY}")
    a("s_lshl_b32 s49, s44, 2")
    a(f"s_add_u32 s49, s49, {K2_SY+16}")
    a("v_mov_b32 v56, s49")
    stamp(a, 2)
    a.label("K2_c0")
    a("ds_read_b128 v[52:55], v51")
    a("s_waitcnt lgkmcnt(0)")
    a("v_min3_u32 v52, v52, v53, v54")
    a("v_min_u32 v52, v52, v55")
    a("v_readfirstlane_b32 s70, v52")
    a("s_cmp_gt_u32 s70, 0")
    a("s_cbranch_scc0 K2_c0")
    stamp(a, 3)
    for t in rd(S0, 0): a(t)
    a("s_waitcnt lgkmcnt(0)")
    a(".p2align 3")
    a.label("K2_cloop")
    L = rd(S1, 1)
    for u in range(6):
        mf(S0, u)
        if u == 0: a("ds_read_b128 v[52:55], v51")
        for t in L[2*u:2*u+2]: a(t)
        if u == 3:
            a("s_add_u32 s65, s65, 1")
            a("s_waitcnt lgkmcnt(7)")
            a("v_min3_u32 v52, v52, v53, v54")
            a("v_min_u32 v52, v52, v55")
            a("v_mov_b32 v57, s65")
        if u == 4:
            a("v_readfirstlane_b32 s70, v52")
            a(f"s_add_u32 s67, s67, {K2_SLOT}")
            a(f"s_cmp_ge_u32 s67, {K2_SLOT*K2_NS}")
            a("s_cselect_b32 s67, 0, s67")
            a("v_add_u32 v1, s67, v6")
            a("v_add_u32 v2, s67, v7")
        if u == 5: a("v_xor_b32 v58, 64, v1")
    a("s_cmp_gt_u32 s70, s65")
    a("s_waitcnt lgkmcnt(0)")
    a("s_cbranch_scc0 K2_cslow")
    a.label("K2_cgo")
    L = rd(S0, 0)
    for u in range(6):
        mf(S1, u)
        if u == 0: a("ds_write_b32 v56, v57")
        for t in L[2*u:2*u+2]: a(t)
    a("s_cmp_lt_u32 s65, s68")
    a("s_waitcnt lgkmcnt(0)")
    a("s_cbranch_scc1 K2_cloop")
    a("s_cmp_lg_u32 s65, 11")
    a("s_cbranch_scc1 K2_h2")
    a("global_load_dword v50, v48, s[36:37] sc1")
    a("s_mov_b32 s68, 13")
    a("s_branch K2_cloop")
    a.label("K2_h2")
    a("s_cmp_lg_u32 s65, 13")
    a("s_cbranch_scc1 K2_h3")
    a("s_mov_b32 s68, 16")
    a("s_waitcnt vmcnt(0)")
    for nt in range(2): a(f"global_load_dwordx2 v[{STR+2*nt}:{STR+2*nt+1}], v49, s[38:39] offset:{256*nt} sc1")
    a("s_branch K2_cloop")
    a.label("K2_h3")
    stamp(a, 4)
    a("v_cmp_ne_u32 vcc, 0, v50")
    a("s_cbranch_vccnz K2_h4")
    a.label("K2_poll")
    a("global_load_dword v50, v48, s[36:37] sc1")
    a("s_waitcnt vmcnt(0)")
    a("v_cmp_eq_u32 vcc, 0, v50")
    a("s_cbranch_vccnz K2_poll")
    for nt in range(2): a(f"global_load_dwordx2 v[{STR+2*nt}:{STR+2*nt+1}], v49, s[38:39] offset:{256*nt} sc1")
    a.label("K2_h4")
    a("s_barrier")
    a("v_bfe_u32 v1, v0, 5, 1")
    a("v_lshlrev_b32 v1, 4, v1")
    a("s_mul_i32 s49, s48, 768")
    a(f"s_add_u32 s49, s49, {K2_PQ}")
    a("v_add_u32 v1, s49, v1")
    def rdpq(f):
        b = PQR + 32*(f & 1)
        for pq in range(2):
            for q in range(4):
                r = b + 16*pq + 4*q
                a(f"ds_read_b128 v[{r}:{r+3}], v1 offset:{f*256+pq*128+q*32}")
    rdpq(0)
    a("s_mul_i32 s49, s48, 3")
    a("s_add_u32 s45, s45, s49")
    a("s_lshl_b32 s49, s47, 1")
    a("s_add_u32 s46, s46, s49")
    srd(a, 48, 38, HH, 64*86*1024)
    a("s_mul_i32 s46, s46, 86")
    a("s_add_u32 s46, s46, s45")
    a("s_lshl_b32 s46, s46, 10")
    a(f"s_add_u32 s47, s46, {86*1024}")
    K1c = -2.0*1.4426950408889634*0.7978845608028654
    a(f"v_mov_b32 v8, {fbits(K1c*0.044715):#x}")
    a(f"v_mov_b32 v9, {fbits(K1c):#x}")
    a("v_mov_b32 v10, 1.0")
    a("v_mov_b32 v11, 1.0")
    a("s_waitcnt vmcnt(0)")
    stamp(a, 5)
    for f in range(3):
        a(f"s_cmp_ge_u32 s45, {86-f}")
        a("s_cbranch_scc1 K2_fin")
        a("s_waitcnt lgkmcnt(0)")
        if f < 2: rdpq(f+1)
        P = PQR + 32*(f & 1)
        for nt in range(2):
            c = ACC + 16*(2*f+nt); s = STR + 2*nt; T = 12 + 16*nt
            for q in range(8):
                a(f"v_pk_fma_f32 v[{T+2*q}:{T+2*q+1}], v[{P+2*q}:{P+2*q+1}], v[{s}:{s+1}], v[{P+16+2*q}:{P+17+2*q}] op_sel:[0,1,0] op_sel_hi:[1,1,1]")
            for q in range(8):
                a(f"v_pk_fma_f32 v[{c+2*q}:{c+2*q+1}], v[{c+2*q}:{c+2*q+1}], v[{s}:{s+1}], v[{T+2*q}:{T+2*q+1}] op_sel:[0,0,0] op_sel_hi:[1,0,1]")
            for q in range(4): a(f"v_pk_mul_f32 v[{T+2*q}:{T+2*q+1}], v[{c+2*q}:{c+2*q+1}], v[{c+2*q}:{c+2*q+1}]")
            for q in range(4): a(f"v_pk_fma_f32 v[{T+2*q}:{T+2*q+1}], v[{T+2*q}:{T+2*q+1}], v[8:9], v[8:9] op_sel:[0,0,1] op_sel_hi:[1,0,1]")
            for q in range(4): a(f"v_pk_mul_f32 v[{T+2*q}:{T+2*q+1}], v[{T+2*q}:{T+2*q+1}], v[{c+2*q}:{c+2*q+1}]")
            for q in range(8): a(f"v_exp_f32 v{T+q}, v{T+q}")
            for q in range(4): a(f"v_pk_mul_f32 v[{c+2*q}:{c+2*q+1}], v[{c+2*q}:{c+2*q+1}], v[{c+8+2*q}:{c+9+2*q}]")
            for q in range(4): a(f"v_pk_add_f32 v[{T+2*q}:{T+2*q+1}], v[{T+2*q}:{T+2*q+1}], v[10:11]")
            for q in range(8): a(f"v_rcp_f32 v{T+q}, v{T+q}")
            for q in range(4): a(f"v_pk_mul_f32 v[{c+2*q}:{c+2*q+1}], v[{c+2*q}:{c+2*q+1}], v[{T+2*q}:{T+2*q+1}]")
            for q in range(4): a(f"v_cvt_pk_bf16_f32 v{c+8+q}, v{c+q}, v{c+4+q}")
            a(f"buffer_store_dwordx4 v[{c+8}:{c+11}], v3, s[48:51], s{46+nt} offen offset:{1024*f}")
    a.label("K2_fin")
    stamp(a, 6)
    endpgm(a, 2)
    a.label("K2_cslow")
    a("ds_write_b32 v56, v57")
    a("ds_read_b128 v[52:55], v51")
    a("s_waitcnt lgkmcnt(0)")
    a("v_min3_u32 v52, v52, v53, v54")
    a("v_min_u32 v52, v52, v55")
    a("v_readfirstlane_b32 s70, v52")
    a("s_cmp_gt_u32 s70, s65")
    a("s_cbranch_scc0 K2_cslow")
    a("s_branch K2_cgo")
    a.label("K2_end")
    a("s_endpgm")
    return a.finalize(), kd('k2_kernel', 256, 102 if STAMP else 80)

K3_X = 49152; K3_LDS = K3_X + 8192
def gen_k3():
    a = Asm()
    head(a, 'k3_kernel')
    a("s_load_dwordx2 s[38:39], s[0:1], 120")
    a("s_load_dwordx2 s[34:35], s[0:1], 104")
    a("s_cmp_ge_u32 s2, 256")
    a("s_cbranch_scc1 K3_end")
    code_prefetch(a, 1, 127)
    a("s_bfe_u32 s40, s2, 0x20001")
    a("s_lshl_b32 s40, s40, 3")
    a("s_lshr_b32 s41, s2, 5")
    a("s_add_u32 s40, s40, s41")
    a("s_and_b32 s41, s2, 1")
    a("s_lshl_b32 s41, s41, 2")
    a("s_bfe_u32 s42, s2, 0x20003")
    a("s_add_u32 s41, s41, s42")
    a("v_lshrrev_b32 v4, 6, v0")
    a("v_and_b32 v5, 63, v0")
    a("v_readfirstlane_b32 s43, v4")
    a("v_lshlrev_b32 v3, 4, v5")
    a("s_and_b32 s44, s43, 1")
    a("s_lshr_b32 s45, s43, 1")
    a("s_lshl_b32 s46, s41, 1")
    a("s_add_u32 s46, s46, s44")
    a("s_lshl_b32 s47, s40, 1")
    a("s_add_u32 s47, s47, s45")
    a("s_xor_b32 s60, s46, 1")
    a("s_xor_b32 s61, s47, 1")
    for r, s in ((8, 46), (9, 60), (10, 47), (11, 61)):
        a(f"s_mul_i32 s62, s{s}, {86*1024}")
        a(f"v_add_u32 v{r}, s62, v3")
    a("s_lshl_b32 s62, s43, 10")
    a("s_waitcnt lgkmcnt(0)")
    srd(a, 48, 38, WD, 16*86*1024)
    srd(a, 52, 38, HH, 64*86*1024)
    NR = 11
    def ld(i):
        r = 16*(i % NR)
        if i == 21:
            a("s_cmp_lt_u32 s43, 2")
            a("s_cselect_b32 s62, s62, 0x10000000")
        a(f"buffer_load_dwordx4 a[{r}:{r+3}], v8, s[48:51], s62 offen")
        a(f"buffer_load_dwordx4 a[{r+8}:{r+11}], v10, s[52:55], s62 offen")
        a(f"buffer_load_dwordx4 a[{r+4}:{r+7}], v9, s[48:51], s62 offen")
        a(f"buffer_load_dwordx4 a[{r+12}:{r+15}], v11, s[52:55], s62 offen")
        a("s_add_u32 s62, s62, 4096")
    srd(a, 56, 38, X1T, 32*LS)
    a("s_lshl_b32 s63, s40, 16")
    a("s_lshl_b32 s64, s46, 12")
    a("s_add_u32 s63, s63, s64")
    a("s_lshl_b32 s64, s45, 6")
    a("s_add_u32 s63, s63, s64")
    a("v_lshrrev_b32 v6, 2, v5")
    a("v_lshlrev_b32 v6, 7, v6")
    a("v_and_b32 v7, 3, v0")
    a("v_lshl_add_u32 v7, v7, 4, v6")
    a("s_lshl_b32 s64, s43, 11")
    a(f"s_add_u32 m0, s64, {K3_X}")
    a("s_lshl_b32 s65, s46, 7")
    a(f"s_add_u32 s65, s65, {MOD + 5*2048:#x}")
    a("buffer_load_dwordx4 v7, s[56:59], s63 offen lds")
    a("s_add_u32 s63, s63, 1024")
    a("buffer_load_dwordx4 v7, s[56:59], s63 offen offset:1024 lds")
    a("v_bfe_u32 v6, v0, 5, 1")
    a("v_lshl_add_u32 v7, v6, 5, s65")
    for q in range(4): a(f"global_load_dwordx4 v[{16+4*q}:{19+4*q}], v7, s[38:39] offset:{64*(q>>1)+16*(q&1)}")
    for i in range(NR): ld(i)
    stamp(a, 2)
    ACC = 64
    def mf(i):
        r = 16*(i % NR)
        for aa in range(4):
            A = r + 4*(aa & 1); B = r + 8 + 4*(aa >> 1); c = ACC + 16*aa
            cc = "0" if i == 0 else f"v[{c}:{c+15}]"
            a(f"v_mfma_f32_32x32x16_bf16 v[{c}:{c+15}], a[{A}:{A+3}], a[{B}:{B+3}], {cc}")
    a("v_lshlrev_b32 v12, 9, v6")
    a("v_bfe_u32 v13, v0, 2, 2")
    a("v_lshl_add_u32 v12, v13, 6, v12")
    a("v_bfe_u32 v13, v0, 4, 1")
    a("v_lshl_add_u32 v12, v13, 5, v12")
    a("v_and_b32 v13, 3, v0")
    a("v_lshl_add_u32 v12, v13, 3, v12")
    a("v_add_u32 v12, s64, v12")
    for i in range(22):
        later = min(21, i + NR - 1) - i
        a(f"s_waitcnt vmcnt({4*later})")
        if i == 0: stamp(a, 3)
        if i == 11: stamp(a, 4)
        if i == 21: stamp(a, 5)
        if i == 0:
            for q in range(4): a(f"ds_read_b64_tr_b16 v[{32+2*q}:{33+2*q}], v12 offset:{K3_X + 1024*(q>>1) + 256*(q&1)}")
        mf(i)
        if i + NR < 22: ld(i + NR)
        if i == 1:
            a("s_waitcnt lgkmcnt(0)")
            for q in range(8):
                a(f"v_lshlrev_b32 v{40+2*q}, 16, v{32+q}")
                a(f"v_and_b32 v{41+2*q}, 0xffff0000, v{32+q}")
        if i == 2:
            for aa in range(1, 4):
                a(f"s_xor_b32 s66, s43, {aa}")
                a("s_mul_i32 s66, s66, 12288")
                a(f"s_add_u32 s66, s66, {(aa-1)*4096}")
                a(f"v_add_u32 v{12+aa}, s66, v3")
            a("s_mul_i32 s66, s43, 12288")
            a("v_add_u32 v12, s66, v3")
            a("v_and_b32 v1, 31, v0")
            a("v_lshlrev_b32 v1, 10, v1")
            a("v_lshl_add_u32 v1, v6, 4, v1")
            a("s_lshl_b32 s66, s47, 15")
            a("s_lshl_b32 s67, s46, 6")
            a("s_add_u32 s66, s66, s67")
            a("v_add_u32 v1, s66, v1")
    for aa in range(1, 4):
        for q in range(4):
            c = ACC + 16*aa + 4*q
            a(f"ds_write_b128 v{12+aa}, v[{c}:{c+3}] offset:{1024*q}")
    a("s_waitcnt lgkmcnt(0)")
    stamp(a, 6)
    a("s_barrier")
    stamp(a, 7)
    for aa in range(1, 4):
        for q in range(4):
            c = ACC + 16*aa + 4*q
            a(f"ds_read_b128 v[{c}:{c+3}], v12 offset:{(aa-1)*4096 + 1024*q}")
    for aa in range(1, 4):
        a(f"s_waitcnt lgkmcnt({4*(3-aa)})")
        for q in range(8):
            a(f"v_pk_add_f32 v[{ACC+2*q}:{ACC+2*q+1}], v[{ACC+2*q}:{ACC+2*q+1}], v[{ACC+16*aa+2*q}:{ACC+16*aa+2*q+1}]")
    for n in range(16):
        i = 4*(n >> 3) + ((n & 7) >> 1) + 8*(n & 1)
        a(f"v_fmac_f32 v{40+n}, v{ACC+i}, v{16+n}")
    for q in range(8): a(f"v_cvt_pk_bf16_f32 v{32+q}, v{40+2*q}, v{41+2*q}")
    for p in range(2):
        a(f"global_store_dwordx4 v1, v[{32+4*p}:{35+4*p}], s[34:35] offset:{32*p}")
    stamp(a, 8)
    endpgm(a, 3)
    a.label("K3_end")
    a("s_endpgm")
    return a.finalize(), kd('k3_kernel', 128 + 176, 102 if STAMP else 80, 128)

KERNELS = [
    ('k1_kernel', gen_k1, 475, 256, K1_LDS),
    ('k2_kernel', gen_k2, 256, 512, K2_LDS),
    ('k3_kernel', gen_k3, 256, 256, K3_LDS),
]
```

```python
import sys
from asmlib import Asm, kd

import os
XS = 8192
LS = 65536
FS = 32768
XT   = 0x000000
ST1  = 0x280000
MOD  = 0x288000
ST2  = 0x290000
MODP = 0x2a0000
PQ   = 0x2c0000
KR   = 0x300000
X1T  = 0x580000
ET   = 0x800000
WGU  = 0xA80000
WD   = 0xE00000
HH   = 0xF80000
LOG2E = 0x3fb8aa3b
INV2PI = 0x3e22f983

import os
STAMP = int(os.environ.get('STAMP', '0'))
DBGO = 0x2000000
def head(a, name):
    a(f".globl {name}\n.p2align 8\n.type {name},@function")
    a.label(name)
    if STAMP:
        a("s_memrealtime s[72:73]")
        a("s_memtime s[74:75]")
        for i in range(2, 14): a(f"s_mov_b32 s{72+2*i}, 0")

def stamp(a, i):
    if STAMP: a(f"s_memrealtime s[{72+2*i}:{73+2*i}]")

def endpgm(a, kidx):
    if STAMP:
        a("s_mov_b64 exec, -1")
        a("s_waitcnt vmcnt(0) lgkmcnt(0)")
        a("s_memrealtime s[100:101]")
        a("s_memtime s[98:99]")
        a("s_waitcnt lgkmcnt(0)")
        a("v_mov_b32 v1, 0")
        for i in range(15): a(f"v_writelane_b32 v1, s{72+2*i}, {i}")
        a("s_getreg_b32 s72, hwreg(HW_REG_XCC_ID)")
        a("v_writelane_b32 v1, s72, 15")
        a(f"s_add_u32 s72, s2, {kidx*1024}")
        a("s_lshl_b32 s72, s72, 9")
        a(f"s_add_u32 s72, s72, {DBGO:#x}")
        a("v_lshrrev_b32 v2, 6, v0")
        a("v_lshlrev_b32 v2, 6, v2")
        a("v_and_b32 v3, 63, v0")
        a("v_lshl_add_u32 v2, v3, 2, v2")
        a("v_add_u32 v2, s72, v2")
        a("s_mov_b64 exec, 0xffff")
        a("global_store_dword v2, v1, s[38:39]")
    a("s_endpgm")

def load_args(a):
    a("s_load_dwordx16 s[8:23], s[0:1], 0")
    a("s_load_dwordx16 s[24:39], s[0:1], 64")

def ws_base(a, sd, off):
    a(f"s_add_u32 s{sd}, s38, {off:#x}")
    a(f"s_addc_u32 s{sd+1}, s39, 0")

def srd(a, sd, sbase, off, size):
    if off:
        a(f"s_add_u32 s{sd}, s{sbase}, {off:#x}")
        a(f"s_addc_u32 s{sd+1}, s{sbase+1}, 0")
    else:
        a(f"s_mov_b32 s{sd}, s{sbase}")
        a(f"s_mov_b32 s{sd+1}, s{sbase+1}")
    a(f"s_mov_b32 s{sd+2}, {size:#x}")
    a(f"s_mov_b32 s{sd+3}, 0x20000")

def code_prefetch(a, vtmp, vdst, nlines_log2=6):
    a("s_getpc_b64 s[4:5]")
    a(f"v_and_b32 v{vtmp}, 63, v0")
    a(f"v_lshlrev_b32 v{vtmp}, 7, v{vtmp}")
    a(f"global_load_dword v{vdst}, v{vtmp}, s[4:5]")

def cmul(a, d, x, w, t):
    a(f"v_pk_mul_f32 v[{t}:{t+1}], v[{x}:{x+1}], v[{w}:{w+1}] op_sel:[1,1] op_sel_hi:[1,0] neg_lo:[1,0]")
    a(f"v_pk_fma_f32 v[{d}:{d+1}], v[{x}:{x+1}], v[{w}:{w+1}], v[{t}:{t+1}] op_sel:[0,0,0] op_sel_hi:[0,1,1]")

def rb1(a, d, s):
    a(f"v_cvt_pk_bf16_f32 v{d}, v{s}, v{s}")
    a(f"v_lshlrev_b32 v{d}, 16, v{d}")

def gen_k0():
    a = Asm()
    head(a, 'k0_kernel')
    load_args(a)
    a("s_cmp_ge_u32 s2, 256")
    a("s_cbranch_scc1 K0_B")
    code_prefetch(a, 1, 127)
    a("s_and_b32 s59, s2, 7")
    a("s_lshl_b32 s59, s59, 5")
    a("s_lshr_b32 s41, s2, 3")
    a("s_add_u32 s59, s59, s41")
    a("s_lshl_b32 s40, s59, 9")
    a("v_lshl_add_u32 v1, v0, 1, s40")
    a("v_lshrrev_b32 v6, 7, v0")
    a("s_lshl_b32 s41, s59, 2")
    a("v_lshl_add_u32 v6, v6, 1, s41")
    a("s_lshl_b32 s42, s2, 13")
    a("s_add_u32 s43, s42, 4096")
    a("v_lshl_add_u32 v8, v0, 2, s43")
    a("v_lshrrev_b32 v9, 5, v0")
    a("v_lshlrev_b32 v9, 10, v9")
    a("v_and_b32 v26, 31, v0")
    a("v_lshl_add_u32 v9, v26, 4, v9")
    a("v_add_u32 v9, s42, v9")
    a("s_waitcnt lgkmcnt(0)")
    a("global_load_ushort v7, v6, s[18:19]")
    a("global_load_ushort v2, v1, s[10:11]")
    a("global_load_ushort v3, v1, s[12:13]")
    a("global_load_ushort v4, v1, s[14:15]")
    a("global_load_ushort v5, v1, s[16:17]")
    for i in range(8):
        a(f"global_load_dword v{10+i}, v8, s[8:9] offset:{i*1024-4096}")
    a("global_load_dwordx4 v[18:21], v9, s[8:9]")
    a("global_load_dwordx4 v[22:25], v9, s[8:9] offset:512")
    ws_base(a, 44, KR)
    ws_base(a, 46, ST1)
    a("s_mul_i32 s48, s59, 9216")
    a("v_lshrrev_b32 v27, 5, v0")
    a("v_mul_u32_u24 v27, 4608, v27")
    a("v_lshl_add_u32 v27, v26, 4, v27")
    a("v_add_u32 v27, s48, v27")
    a("v_add_u32 v27, 0x1000, v27")
    for i in range(4): a(f"v_mov_b32 v{60+i}, 0")
    a("v_cmp_gt_u32 vcc, 64, v0")
    a("s_and_saveexec_b64 s[50:51], vcc")
    a("s_cbranch_execz K0_A_nz")
    a("global_store_dwordx4 v27, v[60:63], s[44:45]")
    a.label("K0_A_nz")
    a("s_mov_b64 exec, -1")
    a("v_lshlrev_b32 v28, 3, v0")
    a("v_sub_u32 v28, 2047, v28")
    for i in range(8):
        a(f"v_subrev_u32 v29, {i}, v28")
        a("v_cvt_f32_u32 v39, v29")
        a("v_cvt_pk_bf16_f32 v39, v39, v39")
        a("v_and_b32 v39, 0xffff, v39")
        a("v_subrev_u32 v39, 0x4280, v39")
        a("v_cmp_gt_u32 vcc, 0x100, v29")
        a(f"v_cndmask_b32 v{30+i}, v39, v29, vcc")
        a(f"v_lshlrev_b32 v{30+i}, 2, v{30+i}")
    a("v_lshrrev_b32 v64, 6, v0")
    a("v_mul_u32_u24 v64, 8704, v64")
    a("v_and_b32 v65, 63, v0")
    a("v_lshl_add_u32 v66, v65, 2, v64")
    a("v_and_b32 v67, 15, v0")
    a("v_bfe_u32 v68, v0, 4, 2")
    a("v_mul_u32_u24 v69, 272, v67")
    a("v_lshl_add_u32 v69, v68, 4, v69")
    a("v_add_u32 v69, v64, v69")
    a("v_and_b32 v70, 1, v68")
    a("v_lshrrev_b32 v71, 1, v68")
    a("v_lshlrev_b32 v72, 5, v67")
    a("v_lshl_add_u32 v72, v70, 4, v72")
    a("v_lshl_add_u32 v72, v71, 9, v72")
    a("v_add_u32 v72, v64, v72")
    a("v_sub_u32 v73, 4, v71")
    a("v_lshlrev_b32 v73, v73, v67")
    a("v_lshl_add_u32 v73, v68, 8, v73")
    a("v_add_u32 v73, v64, v73")
    a("v_mul_u32_u24 v74, 120, v71")
    a("v_add_u32 v74, v73, v74")
    a("v_lshlrev_b32 v75, 2, v67")
    a("v_lshl_add_u32 v75, v68, 8, v75")
    a("v_add_u32 v75, v64, v75")
    a("s_mov_b32 s52, 0x05040100")
    a("s_mov_b32 s53, 0x07060302")
    a(f"s_mov_b32 s54, {LOG2E:#x}")
    a("s_mov_b32 s55, 0x3f803f80")
    stamp(a, 2)
    a("s_waitcnt vmcnt(10)")
    stamp(a, 3)
    for r in (7, 2, 3, 4, 5): a(f"v_lshlrev_b32 v{r}, 16, v{r}")
    a("v_mul_f32 v7, s54, v7")
    a("v_mul_f32 v2, s54, v2")
    a("v_exp_f32 v7, v7")
    a("v_exp_f32 v2, v2")
    a("v_max_f32 v39, abs(v4), abs(v5)")
    a("v_cvt_pk_bf16_f32 v7, v7, v2")
    a("v_and_b32 v2, 0xffff0000, v7")
    a("v_lshlrev_b32 v7, 16, v7")
    for sh in (1, 2, 4, 8):
        a(f"v_max_f32_dpp v39, v39, v39 row_shr:{sh} row_mask:0xf bank_mask:0xf")
    a("v_max_f32_dpp v39, v39, v39 row_bcast:15 row_mask:0xa bank_mask:0xf")
    a("v_max_f32_dpp v39, v39, v39 row_bcast:31 row_mask:0xc bank_mask:0xf")
    a("v_mul_f32 v40, v2, v7")
    a("v_mul_f32 v41, v3, v7")
    a("v_readlane_b32 s56, v39, 63")
    a("v_mul_f32 v40, s54, v40")
    a(f"v_mul_f32 v41, {INV2PI:#x}, v41")
    a("s_lshr_b32 s56, s56, 23")
    a("s_max_u32 s56, s56, 13")
    a("s_min_u32 s56, s56, 254")
    a("s_sub_u32 s57, 267, s56")
    a("s_lshl_b32 s57, s57, 23")
    a("s_sub_u32 s56, s56, 12")
    a("s_lshl_b32 s56, s56, 23")
    def direct(d, p, conj=False):
        import struct
        pf = struct.unpack('<I', struct.pack('<f', float(p)))[0]
        npf = struct.unpack('<I', struct.pack('<f', float(-p)))[0]
        a(f"v_mul_f32 v{d}, {npf:#x}, v40")
        a(f"v_mul_f32 v{d+1}, {(npf if conj else pf):#x}, v41")
        a(f"v_exp_f32 v29, v{d}")
        a(f"v_fract_f32 v{d+1}, v{d+1}")
        a(f"v_cos_f32 v{d}, v{d+1}")
        a(f"v_sin_f32 v{d+1}, v{d+1}")
        a(f"v_mul_f32 v{d}, v{d}, v29")
        a(f"v_mul_f32 v{d+1}, v{d+1}, v29")
    W = {i: 80 + 2*i for i in range(1, 8)}
    W8 = 44; G1 = 46; YA = 48; YB = 50; GA = 52; GB = 54; T0 = 56; T1 = 58; PR = (76, 78)
    direct(W8, 8, conj=True)
    direct(W[1], 1)
    direct(G1, 128)
    a(f"v_mul_f32 v{YA}, s57, v4")
    a(f"v_mul_f32 v{YA+1}, s57, -v5")
    a("v_mul_f32 v7, s56, v7")
    cnt = [0]
    def emit(src, row):
        t = 60 + (cnt[0] & 3); cnt[0] += 1
        a(f"v_cvt_pk_f16_f32 v{t}, v{src}, v{src+1}")
        a(f"ds_write_b32 v66, v{t} offset:{(row % 32)*272}")
    def pair(o1, o2):
        ops = [o for o in (o1, o2) if o]
        for n, (d, x, w, row) in enumerate(ops):
            t = (T0, T1)[n]
            a(f"v_pk_mul_f32 v[{t}:{t+1}], v[{x}:{x+1}], v[{w}:{w+1}] op_sel:[1,1] op_sel_hi:[1,0] neg_lo:[1,0]")
        for n, (d, x, w, row) in enumerate(ops):
            t = (T0, T1)[n]
            a(f"v_pk_fma_f32 v[{d}:{d+1}], v[{x}:{x+1}], v[{w}:{w+1}], v[{t}:{t+1}] op_sel:[0,0,0] op_sel_hi:[0,1,1]")
    pend = []
    def flush():
        ts = []
        for (d, row) in pend:
            t = 60 + (cnt[0] & 3); cnt[0] += 1
            a(f"v_cvt_pk_f16_f32 v{t}, v{d}, v{d+1}"); ts.append((t, row))
        for t, row in ts: a(f"ds_write_b32 v66, v{t} offset:{(row % 32)*272}")
        del pend[:]
    def run(l1, l2):
        for n in range(max(len(l1), len(l2))):
            o1 = l1[n] if n < len(l1) else None
            o2 = l2[n] if n < len(l2) else None
            pair(o1, o2)
            for o in (o1, o2):
                if o and o[3] is not None: pend.append((o[0], o[3]))
            flush()
    a("v_mov_b32 v42, 0x3c00")
    a(f"ds_write_b32 v66, v42 offset:{16*272}")
    emit(YA, 0); emit(W[1], 17); emit(G1, 24)
    chainY = []
    cur, nxt = YA, YB
    for j in range(1, 16):
        chainY.append((nxt, cur, W8, j)); cur, nxt = nxt, cur
    chainX = [(PR[0], W[1], G1, 25)]
    for i in range(2, 8):
        chainX.append((W[i], W[i-1], W[1], 16+i))
        chainX.append((PR[i & 1], W[i], G1, 24+i))
    chainX.append((GA, G1, G1, None))
    run(chainY, chainX)
    a("s_waitcnt lgkmcnt(0)")
    stamp(a, 4)
    FY = 96; FX = 112
    for ks in range(4): a(f"ds_read_b128 v[{FY+4*ks}:{FY+4*ks+3}], v69 offset:{ks*64}")
    for ks in range(4): a(f"ds_read_b128 v[{FX+4*ks}:{FX+4*ks+3}], v69 offset:{16*272 + ks*64}")
    GR = (GA, GB, YA)
    chainG = []; chainP = []
    def g(k): return GR[(k - 2) % 3]
    for k in range(3, 17):
        row = {3: 36, 4: 40, 5: 42, 6: 44, 7: 46}.get(k, 40 + k)
        chainG.append((g(k), g(k-1), G1, row))
    sched = [
        ((g(3), g(2), G1, 36), (PR[0], g(2), W[2], 33)),
        ((PR[1], g(2), W[4], 34), (PR[0], g(2), W[6], 35)),
        ((g(4), g(3), G1, 40), (PR[0], g(3), W[2], 37)),
        ((PR[1], g(3), W[4], 38), (PR[0], g(3), W[6], 39)),
        ((g(5), g(4), G1, 42), (PR[0], g(4), W[4], 41)),
        ((g(6), g(5), G1, 44), (PR[0], g(5), W[4], 43)),
        ((g(7), g(6), G1, 46), (PR[0], g(6), W[4], 45)),
        ((g(8), g(7), G1, 48), (PR[0], g(7), W[4], 47)),
    ]
    a(f"v_mov_b32 v{W[7]}, v{GA}")
    a(f"v_mov_b32 v{W[7]+1}, v{GA+1}")
    G2 = W[7]
    E0 = g(8); O0 = g(7)
    ev = [W[5], W[3]]; od = [W[1], YB]
    prevE, prevO = E0, O0
    for n in range(4):
        de, do = ev[n & 1], od[n & 1]
        sched.append(((do, prevO, G2, 49 + 2*n), (de, prevE, G2, 50 + 2*n)))
        prevE, prevO = de, do
    a("s_waitcnt vmcnt(0)")
    for i in range(4):
        a(f"v_perm_b32 v{2+i}, v{11+2*i}, v{10+2*i}, s52" if False else f"v_perm_b32 v{128+i}, v{11+2*i}, v{10+2*i}, s52")
        a(f"v_perm_b32 v{132+i}, v{11+2*i}, v{10+2*i}, s53")
    a(f"s_mul_i32 s43, s2, {XS}")
    a("v_lshl_add_u32 v8, v0, 5, s43")
    a("global_store_dwordx4 v8, v[128:131], s[38:39]")
    a("global_store_dwordx4 v8, v[132:135], s[38:39] offset:16")
    ACC = 136
    a("s_waitcnt lgkmcnt(0)")
    for ks in range(4):
        c = "0" if ks == 0 else f"v[{ACC}:{ACC+3}]"
        a(f"v_mfma_f32_16x16x32_f16 v[{ACC}:{ACC+3}], v[{FX+4*ks}:{FX+4*ks+3}], v[{FY+4*ks}:{FY+4*ks+3}], {c}")
    emit(GA, 32)
    run([p[0] for p in sched], [p[1] for p in sched])
    a("s_waitcnt lgkmcnt(0)")
    FX2 = 76
    for ks in range(4): a(f"ds_read_b128 v[{FX+4*ks}:{FX+4*ks+3}], v69 offset:{ks*64}")
    for ks in range(4): a(f"ds_read_b128 v[{FX2+4*ks}:{FX2+4*ks+3}], v69 offset:{16*272 + ks*64}")
    a("v_mov_b32 v10, 0")
    a("v_mov_b32 v11, 0")
    for i in range(8):
        a(f"v_dot2_f32_bf16 v10, v{18+i}, s55, v10")
        a(f"v_dot2_f32_bf16 v11, v{18+i}, v{18+i}, v11")
    for t, fx in ((1, FX), (2, FX2)):
        a(f"s_waitcnt lgkmcnt({4 if t == 1 else 0})")
        for ks in range(4):
            c = "0" if ks == 0 else f"v[{ACC+4*t}:{ACC+4*t+3}]"
            a(f"v_mfma_f32_16x16x32_f16 v[{ACC+4*t}:{ACC+4*t+3}], v[{fx+4*ks}:{fx+4*ks+3}], v[{FY+4*ks}:{FY+4*ks+3}], {c}")
    for sh in (1, 2, 4, 8):
        a(f"v_add_f32_dpp v10, v10, v10 row_shr:{sh} row_mask:0xf bank_mask:0xf")
        a(f"v_add_f32_dpp v11, v11, v11 row_shr:{sh} row_mask:0xf bank_mask:0xf")
    a("v_add_f32_dpp v10, v10, v10 row_bcast:15 row_mask:0xa bank_mask:0xf")
    a("v_add_f32_dpp v11, v11, v11 row_bcast:15 row_mask:0xa bank_mask:0xf")
    for i in range(12): a(f"v_mul_f32 v{ACC+i}, v{ACC+i}, v7")
    a(f"ds_write_b128 v72, v[{ACC}:{ACC+3}]")
    a(f"ds_write_b64 v73, v[{ACC+4}:{ACC+5}] offset:1024")
    a(f"ds_write_b64 v74, v[{ACC+6}:{ACC+7}] offset:1032")
    for i in range(4): a(f"ds_write_b32 v75, v{ACC+8+i} offset:{2048+64*i}")
    stats_finalize(a, 10, 11, 12, 13, 14)
    a("v_lshrrev_b32 v9, 5, v0")
    a("s_lshl_b32 s40, s2, 6")
    a("v_lshl_add_u32 v9, v9, 3, s40")
    a("s_mov_b32 exec_lo, 0x80000000")
    a("s_mov_b32 exec_hi, 0x80000000")
    a("global_store_dwordx2 v9, v[12:13], s[46:47]")
    a("s_mov_b64 exec, -1")
    a("s_waitcnt lgkmcnt(0)")
    stamp(a, 5)
    a("s_barrier")
    stamp(a, 6)
    a("v_lshl_add_u32 v8, v0, 4, s48")
    a("v_add_u32 v9, 4608, v8")
    for ch in range(2):
        b = 80 + ch*16
        for i in range(8):
            a(f"ds_read2st64_b32 v[{b+2*i}:{b+2*i+1}], v{30+i} offset0:{ch*68} offset1:{ch*68+34}")
    for ch in range(2):
        b = 80 + ch*16
        a(f"s_waitcnt lgkmcnt({8 if ch == 0 else 0})")
        for i in range(8): a(f"v_add_f32 v{b+2*i}, v{b+2*i}, v{b+2*i+1}")
        o = 40 + ch*4
        for q in range(4): a(f"v_cvt_pk_bf16_f32 v{o+q}, v{b+4*q}, v{b+4*q+2}")
        a(f"global_store_dwordx4 v{8+ch}, v[{o}:{o+3}], s[44:45]")
    stamp(a, 7)
    endpgm(a, 0)
    a.label("K0_B")
    a("s_cmp_ge_u32 s2, 448")
    a("s_cbranch_scc1 K0_end")
    code_prefetch(a, 1, 127)
    a("s_sub_u32 s40, s2, 256")
    a("s_and_b32 s41, s40, 7")
    a("s_lshr_b32 s40, s40, 3")
    a("v_lshrrev_b32 v1, 4, v0")
    a("v_and_b32 v2, 15, v0")
    a("v_mul_u32_u24 v3, 24576, v1")
    a("v_lshl_add_u32 v3, v2, 4, v3")
    a("s_mul_i32 s42, s41, 393216")
    a("s_lshl_b32 s43, s40, 8")
    a("s_add_u32 s42, s42, s43")
    a("v_add_u32 v3, s42, v3")
    a("s_lshl_b32 s42, s41, 7")
    a("v_lshl_add_u32 v4, v1, 3, s42")
    a("s_waitcnt lgkmcnt(0)")
    srd(a, 44, 32, 0, 512*6144)
    a("global_load_dwordx2 v[8:9], v4, s[30:31]")
    for i in range(4):
        a(f"s_mov_b32 s48, {i*6144}")
        a(f"buffer_load_dwordx4 v[{16+4*i}:{19+4*i}], v3, s[44:47], s48 offen")
    a(f"s_mov_b32 s54, {(LOG2E | 0x80000000):#x}")
    a("v_lshrrev_b32 v5, 6, v0")
    a("v_lshlrev_b32 v5, 9, v5")
    a("v_lshl_add_u32 v5, v2, 5, v5")
    a("v_bfe_u32 v6, v0, 4, 1")
    a("v_lshl_add_u32 v5, v6, 3, v5")
    a("v_bfe_u32 v6, v0, 5, 1")
    a("v_lshl_add_u32 v5, v6, 2, v5")
    ws_base(a, 46, MODP)
    a("s_mul_i32 s42, s41, 12288")
    a("s_lshl_b32 s43, s40, 9")
    a("s_add_u32 s42, s42, s43")
    a("v_lshl_add_u32 v6, v0, 2, s42")
    a("v_lshlrev_b32 v7, 2, v0")
    a("s_waitcnt vmcnt(4)")
    for i in range(2):
        a(f"v_lshlrev_b32 v{48+2*i}, 16, v{8+i}")
        a(f"v_and_b32 v{49+2*i}, 0xffff0000, v{8+i}")
    for i in range(4): a(f"v_mul_f32 v{56+i}, s54, v{48+i}")
    for i in range(4): a(f"v_exp_f32 v{56+i}, v{56+i}")
    for i in range(4): a(f"v_add_f32 v{56+i}, 1.0, v{56+i}")
    for i in range(4): a(f"v_rcp_f32 v{56+i}, v{56+i}")
    for i in range(4): a(f"v_mul_f32 v{48+i}, v{48+i}, v{56+i}")
    for i in range(2):
        a(f"v_cvt_pk_bf16_f32 v{56+i}, v{48+2*i}, v{49+2*i}")
        a(f"v_lshlrev_b32 v{48+2*i}, 16, v{56+i}")
        a(f"v_and_b32 v{49+2*i}, 0xffff0000, v{56+i}")
    for i in range(4):
        a(f"s_waitcnt vmcnt({3-i})")
        for q in range(4):
            a(f"v_lshlrev_b32 v{72+2*q}, 16, v{16+4*i+q}")
            a(f"v_and_b32 v{73+2*q}, 0xffff0000, v{16+4*i+q}")
        for q in range(8):
            if i == 0: a(f"v_mul_f32 v{64+q}, v48, v{72+q}")
            else: a(f"v_fmac_f32 v{64+q}, v{48+i}, v{72+q}")
    for q in range(4): a(f"v_permlane32_swap_b32 v{64+2*q}, v{65+2*q}")
    for q in range(4): a(f"v_add_f32 v{64+2*q}, v{64+2*q}, v{65+2*q}")
    for q in range(2): a(f"v_permlane16_swap_b32 v{64+4*q}, v{66+4*q}")
    for q in range(2): a(f"v_add_f32 v{64+4*q}, v{64+4*q}, v{66+4*q}")
    a("ds_write2_b32 v5, v64, v68 offset0:0 offset1:4")
    a("s_waitcnt lgkmcnt(0)")
    a("s_barrier")
    a("v_cmp_gt_u32 vcc, 128, v0")
    a("s_and_saveexec_b64 s[50:51], vcc")
    a("s_cbranch_execz K0_end")
    a("ds_read2st64_b32 v[16:17], v7 offset0:0 offset1:2")
    a("ds_read2st64_b32 v[18:19], v7 offset0:4 offset1:6")
    a("s_waitcnt lgkmcnt(0)")
    a("v_add_f32 v16, v16, v17")
    a("v_add_f32 v18, v18, v19")
    a("v_add_f32 v16, v16, v18")
    a("global_store_dword v6, v16, s[46:47]")
    endpgm(a, 0)
    a.label("K0_end")
    a("s_endpgm")
    return a.finalize(), kd('k0_kernel', 152, 102 if STAMP else 64)

def stats_finalize(a, S, SS, R, RM, T):
    a(f"v_mul_f32 v{S}, 0x3b000000, v{S}")
    a(f"v_mul_f32 v{T}, v{S}, v{S}")
    a(f"v_fma_f32 v{SS}, v{SS}, s58, -v{T}" if False else f"v_mul_f32 v{SS}, 0x3b000000, v{SS}")
    a(f"v_sub_f32 v{SS}, v{SS}, v{T}")
    a(f"v_max_f32 v{SS}, 0, v{SS}")
    a(f"v_cvt_pk_bf16_f32 v{T}, v{S}, v{SS}")
    a(f"v_lshlrev_b32 v{S}, 16, v{T}")
    a(f"v_and_b32 v{SS}, 0xffff0000, v{T}")
    a(f"v_add_f32 v{SS}, 0x3727c5ac, v{SS}")
    rb1(a, SS, SS)
    a(f"v_sqrt_f32 v{SS}, v{SS}")
    rb1(a, SS, SS)
    a(f"v_rcp_f32 v{R}, v{SS}")
    a(f"v_mul_f32 v{RM}, -v{S}, v{R}")

KERNELS = [
    ('k0_kernel', gen_k0, 448, 256, 34816),
]

def main(out):
    import gen_rest
    ks = KERNELS + gen_rest.KERNELS
    hdr = open('adaLN_cond__ssm_conv_s4d__glu_gated_geglu__prompt.s.ref').read().split('; Override launch')[0]
    s = hdr
    for n, g, grid, blk, lds in ks:
        s += f"; @launch kernel={n} grid=({grid},1,1) block=({blk},1,1) lds={lds}\n"
    s += '.amdgcn_target "amdgcn-amd-amdhsa--gfx950"\n.text\n'
    kds = []
    for n, g, grid, blk, lds in ks:
        body, k = g()
        s += body + '\n'
        kds.append(k)
    s += ".p2align 8\n.fill 2304, 4, 0xbf810000\n"
    s += '.section .rodata,"a"\n'
    for k in kds: s += '.p2align 6\n' + k + '\n'
    open(out, 'w').write(s)

if __name__ == '__main__':
    main(sys.argv[1] if len(sys.argv) > 1 else 'adaLN_cond__ssm_conv_s4d__glu_gated_geglu__prompt.s')
```
